```python
import torch

def _softmax(x, axis=-1):
    return torch.softmax(x, dim=axis)

def _gelu(x):
    return torch.nn.functional.gelu(x, approximate='tanh')

def _silu(x):
    return torch.nn.functional.silu(x)

def _sigmoid(x):
    return torch.sigmoid(x)

def _layernorm(x, axis=-1, eps=1e-05):
    m = x.mean(dim=axis, keepdim=True)
    v = x.var(dim=axis, keepdim=True, unbiased=False)
    return (x - m) / torch.sqrt(v + eps)

def _scatter_add(tgt, idx, src, axis=0):
    return tgt.clone().index_add_(axis, idx, src)

def _segment_sum(src, seg, n):
    out = torch.zeros((n,) + src.shape[1:], dtype=src.dtype)
    return out.index_add_(0, seg, src)

def _pad(x, pw):
    flat = tuple((v for pair in reversed(pw) for v in pair))
    return torch.nn.functional.pad(x, flat)
kernel_name = 'adaLN_cond__ssm_conv_s4__glu_gated_reglu__prompt'

def setup_inputs():

    _w = lambda a: (lambda t: t.to(torch.bfloat16) if t.is_floating_point() else t)(torch.as_tensor(a))

    def _A_setup():
        B, L, D, N = (1, 2048, 448, 256)
        A_re = -(lambda _x: torch.exp(torch.as_tensor(_x)))((lambda *s: torch.randn(*s, dtype=torch.bfloat16) * 3.2)(D, N))
        A_im = torch.pi * (lambda *s: torch.randn(*s, dtype=torch.bfloat16) * 0.1)(D, N)
        B_re = (lambda *s: torch.randn(*s, dtype=torch.bfloat16) * 0.1)(D, N)
        B_im = (lambda *s: torch.randn(*s, dtype=torch.bfloat16) * 0.1)(D, N)
        C_re = (lambda *s: torch.randn(*s, dtype=torch.bfloat16) * 0.1)(D, N)
        C_im = (lambda *s: torch.randn(*s, dtype=torch.bfloat16) * 0.1)(D, N)
        log_dt = (lambda *s: torch.randn(*s, dtype=torch.bfloat16) * 0.1)(D) * 0.5 - 4.0
        Dskip = (lambda *s: torch.randn(*s, dtype=torch.bfloat16) * 0.1)(D)
        return {'u': _w((lambda *s: torch.randn(*s, dtype=torch.bfloat16) * 0.05)(B, L, D)), 'A_re': _w(A_re), 'A_im': _w(A_im), 'B_re': _w(B_re), 'B_im': _w(B_im), 'C_re': _w(C_re), 'C_im': _w(C_im), 'log_dt': _w(log_dt), 'Dskip': _w(Dskip)}
    _A_in = _A_setup()

    def _B_setup():
        B, S, D, F = (1, 2048, 448, 1792)
        return {'x': _w((lambda *s: torch.randn(*s, dtype=torch.bfloat16) * 0.05)(B, S, D)), 'W_gate': _w((lambda *s: torch.randn(*s, dtype=torch.bfloat16) * 1.6)(D, F) * (2.0 / D) ** 0.5), 'W_up': _w((lambda *s: torch.randn(*s, dtype=torch.bfloat16) * 1.6)(D, F) * (2.0 / D) ** 0.5), 'W_down': _w((lambda *s: torch.randn(*s, dtype=torch.bfloat16) * 1.6)(F, D) * (1.0 / F) ** 0.5)}
    _B_in = _B_setup()
    return {'A_u': _A_in['u'], 'A_A_re': _A_in['A_re'], 'A_A_im': _A_in['A_im'], 'A_B_re': _A_in['B_re'], 'A_B_im': _A_in['B_im'], 'A_C_re': _A_in['C_re'], 'A_C_im': _A_in['C_im'], 'A_log_dt': _A_in['log_dt'], 'A_Dskip': _A_in['Dskip'], 'B_x': _B_in['x'], 'B_W_gate': _B_in['W_gate'], 'B_W_up': _B_in['W_up'], 'B_W_down': _B_in['W_down'], 'c': _w((lambda *s: torch.randn(*s, dtype=torch.bfloat16) * 0.2)(1, 448) * 8.0), 'w_mod': _w((lambda *s: torch.randn(*s, dtype=torch.bfloat16) * 0.2)(448, 6 * 448) * 448 ** (-0.5) * 8.0)}

def reference(A_u, A_A_re, A_A_im, A_B_re, A_B_im, A_C_re, A_C_im, A_log_dt, A_Dskip, B_x, B_W_gate, B_W_up, B_W_down, c, w_mod):

    def _A_ref(u, A_re, A_im, B_re, B_im, C_re, C_im, log_dt, Dskip):
        Bsz, L, D = u.shape
        dt = torch.exp(log_dt)[:, None]
        A = A_re + 1j * A_im
        Bc = B_re + 1j * B_im
        Cc = C_re + 1j * C_im
        logdA = dt * A
        dB = dt * Bc
        l = (lambda x, dt: x.to(dt))(torch.arange(L), A_re.dtype)
        P = torch.exp(logdA[:, :, None] * l[None, None, :])
        K = torch.einsum('dn,dnl,dn->dl', Cc, P, dB).real
        L2 = 2 * L
        Kp = _pad(K, ((0, 0), (0, L)))
        up = (lambda x, *d: x.permute(*d))(u, 0, 2, 1)
        up = _pad(up, ((0, 0), (0, 0), (0, L)))
        Kf = (lambda x, axes=(-2, -1): torch.fft.rfft2(x.float(), dim=axes))(Kp[:, None, :], axes=(-2, -1))
        Uf = (lambda x, axes=(-2, -1): torch.fft.rfft2(x.float(), dim=axes))(up[:, :, None, :], axes=(-2, -1))
        Yf = Uf * Kf[None, :, :, :]
        y = (lambda x, s, axes=(-2, -1): torch.fft.irfft2(x, s=s, dim=axes).to(torch.bfloat16))(Yf, (1, L2), axes=(-2, -1))[:, :, 0, :L]
        y = (lambda x, *d: x.permute(*d))(y, 0, 2, 1) + u * Dskip[None, None, :]
        return y

    def _B_ref(x, W_gate, W_up, W_down):
        gate = torch.einsum('bsd,df->bsf', x, W_gate)
        up = torch.einsum('bsd,df->bsf', x, W_up)
        gate = gate * (lambda x, dt: x.to(dt))(gate > 0, gate.dtype)
        h = gate * up
        return torch.einsum('bsf,fd->bsd', h, W_down)
    x = A_u
    mod = (_silu(c) @ w_mod).reshape(c.shape[0], 6, 1, -1)
    sa, ca, ga, sb, cb, gb = (mod[:, 0].clone(), mod[:, 1].clone(), mod[:, 2].clone(), mod[:, 3].clone(), mod[:, 4].clone(), mod[:, 5].clone())
    h = _layernorm(x, axis=-1) * (1 + ca) + sa
    x = x + ga * _A_ref(h, A_A_re, A_A_im, A_B_re, A_B_im, A_C_re, A_C_im, A_log_dt, A_Dskip)
    h = _layernorm(x, axis=-1) * (1 + cb) + sb
    x = x + gb * _B_ref(h, B_W_gate, B_W_up, B_W_down)
    return x
```

```python
import re

_REG = re.compile(r'^(-|abs\()?\s*([vas])(?:(\d+)|\[(\d+):(\d+)\])\)?$')
def parse_reg(tok):
    tok = tok.strip()
    if tok in ('vcc',): return [('s', 'vcc_lo'), ('s', 'vcc_hi')]
    if tok in ('vcc_lo', 'vcc_hi', 'm0', 'exec_lo', 'exec_hi'): return [('s', tok)]
    if tok == 'exec': return [('s', 'exec_lo'), ('s', 'exec_hi')]
    if tok.startswith('|') and tok.endswith('|'): tok = tok[1:-1]
    if tok.startswith('-|') and tok.endswith('|'): tok = tok[2:-1]
    m = _REG.match(tok)
    if not m: return []
    k = m.group(2)
    if m.group(3) is not None: return [(k, int(m.group(3)))]
    return [(k, i) for i in range(int(m.group(4)), int(m.group(5)) + 1)]

TRANS = ('v_exp_f32', 'v_log_f32', 'v_rcp_f32', 'v_rsq_f32', 'v_sqrt_f32', 'v_sin_f32', 'v_cos_f32', 'v_rcp_iflag_f32')

class Ins:
    __slots__ = ('op', 'kind', 'w', 'r', 'dpp', 'passes', 'srcc', 'ab', 'states', 'wide_data', 'lds_dma', 'trans', 'permlane', 'readlane', 'text')

def split_ops(s):
    out = []; depth = 0; cur = ''
    for ch in s:
        if ch in '[(': depth += 1
        if ch in '])': depth -= 1
        if ch == ',' and depth == 0:
            out.append(cur.strip()); cur = ''
        else: cur += ch
    if cur.strip(): out.append(cur.strip())
    return out

def analyze(line):
    I = Ins(); I.text = line
    code = line.split(';')[0].strip()
    parts = code.split(None, 1)
    op = parts[0]; rest = parts[1] if len(parts) > 1 else ''
    I.op = op; I.w = set(); I.r = set(); I.dpp = False; I.passes = 0; I.srcc = set(); I.ab = set(); I.states = 1
    I.wide_data = set(); I.lds_dma = False; I.trans = False; I.permlane = False; I.readlane = False
    ops = split_ops(rest)
    mods = ''
    if ops:
        last = ops[-1]
        depth = 0
        for i, ch in enumerate(last):
            if ch in '[(': depth += 1
            if ch in '])': depth -= 1
            if ch == ' ' and depth == 0:
                mods = last[i:]; ops[-1] = last[:i]; break
    regs = [parse_reg(o) for o in ops]
    base = re.sub(r'_(e32|e64|dpp|sdwa)$', '', op)
    if op == 's_nop':
        I.kind = 'nop'; I.states = int(ops[0], 0) + 1
    elif op.startswith('v_mfma'):
        I.kind = 'mfma'
        I.passes = 8 if '32x32x16' in op else 4 if '16x16x32' in op else None
        assert I.passes, op
        I.w = set(regs[0]); I.ab = set(regs[1]) | set(regs[2]); I.srcc = set(regs[3]); I.r = I.ab | I.srcc
    elif op.startswith('v_'):
        I.kind = 'valu'
        I.dpp = ('_dpp' in op) or any(k in mods for k in ('quad_perm', 'row_', 'wave_'))
        I.trans = base in TRANS
        if base.startswith('v_permlane') and 'swap' in base:
            I.permlane = True
            I.w = set(regs[0]) | set(regs[1]); I.r = set(I.w)
        elif base in ('v_readfirstlane_b32', 'v_readlane_b32'):
            I.readlane = True
            I.w = set(regs[0]); I.r = set().union(*[set(x) for x in regs[1:]])
        elif base.startswith('v_cmp'):
            I.w = set(regs[0]); I.r = set().union(*[set(x) for x in regs[1:]])
            assert not base.startswith('v_cmpx')
        elif base in ('v_add_co_u32', 'v_sub_co_u32', 'v_addc_co_u32', 'v_subb_co_u32'):
            I.w = set(regs[0]) | set(regs[1]); I.r = set().union(*[set(x) for x in regs[2:]])
        else:
            I.w = set(regs[0]); I.r = set().union(*[set(x) for x in regs[1:]]) if len(regs) > 1 else set()
            if base in ('v_fmac_f32', 'v_dot2c_f32_bf16', 'v_pk_fmac_f16') or I.dpp: I.r |= I.w
    elif op.startswith('buffer_') or op.startswith('global_'):
        I.kind = 'vmem'
        is_lds = (' lds' in (' ' + mods)) or ('load_lds' in op)
        if is_lds:
            I.lds_dma = True
            I.r = set().union(*[set(x) for x in regs]); I.r.add(('s', 'm0'))
        elif '_load' in op:
            I.w = set(regs[0]); I.r = set().union(*[set(x) for x in regs[1:]])
        elif '_store' in op or '_atomic' in op:
            I.r = set().union(*[set(x) for x in regs])
            if 'x3' in op or 'x4' in op:
                data = regs[0] if op.startswith('buffer_') else regs[1]
                I.wide_data = set(data)
        elif op in ('buffer_wbl2', 'buffer_inv'):
            pass
        else: raise ValueError(line)
    elif op.startswith('ds_'):
        I.kind = 'ds'
        if op.startswith('ds_read') or op.startswith('ds_bpermute') or op.startswith('ds_swizzle') or op.startswith('ds_permute'):
            I.w = set(regs[0]); I.r = set().union(*[set(x) for x in regs[1:]])
        else:
            I.r = set().union(*[set(x) for x in regs])
    elif op.startswith('s_'):
        I.kind = 'salu'
        if op.startswith('s_cmp') or op.startswith('s_cbranch') or op in ('s_branch', 's_barrier', 's_waitcnt', 's_endpgm', 's_setprio', 's_sleep', 's_bitcmp0_b32', 's_bitcmp1_b32'):
            I.r = set().union(*[set(x) for x in regs]) if regs else set()
        else:
            I.w = set(regs[0]) if regs else set()
            I.r = set().union(*[set(x) for x in regs[1:]]) if len(regs) > 1 else set()
            if 'saveexec' in op: I.w |= {('s', 'exec_lo'), ('s', 'exec_hi')}
    else:
        raise ValueError('unknown instruction: ' + line)
    return I

def vec(S): return {x for x in S if x[0] in 'va'}
def sca(S): return {x for x in S if x[0] == 's'}

def need(p, c):
    n = 0
    if p.kind == 'valu':
        pv = vec(p.w); ps = sca(p.w)
        if c.kind == 'mfma' and (pv & c.r): n = max(n, 2)
        if c.kind == 'valu':
            if p.trans and not c.trans and (pv & c.r): n = max(n, 1)
            if c.dpp and (pv & c.r): n = max(n, 2)
            if c.permlane and (pv & c.r): n = max(n, 2)
            if c.readlane and (pv & c.r): n = max(n, 1)
            if ps & c.r: n = max(n, 4 if c.readlane else 2)
        if c.kind in ('vmem', 'ds') and p.trans and (pv & c.r): n = max(n, 1)
        if c.kind == 'vmem' and (ps & c.r): n = max(n, 5)
        if c.kind == 'salu' and (ps & c.r): n = max(n, 1)
    if p.kind == 'mfma':
        big = 12 if p.passes == 8 else 8
        if c.kind == 'mfma':
            if p.w & c.ab: n = max(n, big)
            if p.w & c.srcc:
                if not (p.w == c.srcc and p.passes == c.passes): n = max(n, big - 2)
            if (p.w & c.w) and not (p.w == c.srcc and p.passes == c.passes): n = max(n, big - 2)
        elif c.kind in ('valu', 'vmem', 'ds'):
            if p.w & (c.r | c.w): n = max(n, big)
            if c.kind == 'valu' and (p.srcc & c.w): n = max(n, 7 if p.passes == 8 else 3)
    if p.kind == 'vmem' and p.wide_data and (p.wide_data & c.w): n = max(n, 2 if c.kind in ('valu', 'mfma') else 1)
    if p.kind == 'salu' and ('s', 'm0') in p.w and c.lds_dma: n = max(n, 1)
    return n

class Asm:
    def __init__(self):
        self.lines = []
        self.launches = []
        self.descs = []
        self.hist = []
        self.nops = 0
        self.maxv = -1; self.maxa = -1; self.maxs = -1
    def emit1(self, ln):
        s = ln.strip()
        if not s or s.startswith(';'):
            self.lines.append('    ' + s if s else ''); return
        if s.endswith(':') or s.startswith('.'):
            self.lines.append(s); return
        I = analyze(s)
        for (k, n) in (I.w | I.r):
            if isinstance(n, int):
                if k == 'v': self.maxv = max(self.maxv, n)
                elif k == 'a': self.maxa = max(self.maxa, n)
                else: self.maxs = max(self.maxs, n)
        dist = 0; pad = 0
        for p in reversed(self.hist):
            nd = need(p, I)
            if nd > dist: pad = max(pad, nd - dist)
            dist += p.states
            if dist >= 20: break
        if pad:
            nop = analyze(f's_nop {pad-1}')
            self.lines.append(f'    s_nop {pad-1}'); self.hist.append(nop); self.nops += 1
        self.lines.append('    ' + s)
        self.hist.append(I)
        if len(self.hist) > 40: self.hist = self.hist[-24:]
    def __call__(self, s=''):
        for ln in s.split('\n'): self.emit1(ln)
    def label(self, n): self.lines.append(n + ':')
    def begin_kernel(self, name):
        self.hist = []; self.maxv = self.maxa = self.maxs = -1
        self.lines.append('.p2align 8')
        self.lines.append(f'.globl {name}')
        self.lines.append(f'.type {name},@function')
        self.lines.append(name + ':')
    def end_kernel(self, name, vgpr=None, sgpr=None, accum=None, denorm=True):
        arch = self.maxv + 1
        if accum is None: accum = max(4, (arch + 3) // 4 * 4)
        assert arch <= accum <= 256, (arch, accum)
        tot = accum + self.maxa + 1 if self.maxa >= 0 else arch
        if vgpr is None: vgpr = tot
        assert vgpr >= tot
        if sgpr is None: sgpr = self.maxs + 1
        assert sgpr <= 102
        d = [f'.amdhsa_kernel {name}',
             f'  .amdhsa_next_free_vgpr {vgpr}',
             f'  .amdhsa_next_free_sgpr {sgpr}',
             f'  .amdhsa_accum_offset {accum}',
             '  .amdhsa_group_segment_fixed_size 0',
             '  .amdhsa_kernarg_size 144',
             '  .amdhsa_user_sgpr_count 2',
             '  .amdhsa_user_sgpr_kernarg_segment_ptr 1',
             '  .amdhsa_system_sgpr_workgroup_id_x 1']
        if denorm: d.append('  .amdhsa_float_denorm_mode_32 3')
        d.append('.end_amdhsa_kernel')
        self.descs.append('\n'.join(d))
    def launch(self, name, grid, block, lds=0):
        self.launches.append(f'; @launch kernel={name} grid=({grid},1,1) block=({block},1,1) lds={lds}')
    def text(self, header=''):
        out = []
        if header: out.append(header.rstrip('\n'))
        out += self.launches
        out.append('.amdgcn_target "amdgcn-amd-amdhsa--gfx950"')
        out.append('.text')
        out += self.lines
        out.append('.section .rodata,"a"')
        for d in self.descs:
            out.append('.p2align 6')
            out.append(d)
        return '\n'.join(out) + '\n'

def v(n, cnt=1): return f'v{n}' if cnt == 1 else f'v[{n}:{n+cnt-1}]'
def a_(n, cnt=1): return f'a{n}' if cnt == 1 else f'a[{n}:{n+cnt-1}]'
def s(n, cnt=1): return f's{n}' if cnt == 1 else f's[{n}:{n+cnt-1}]'
import struct
def f2u(x): return struct.unpack('<I', struct.pack('<f', x))[0]
def fhex(x): return f'0x{f2u(x):08x}'
```

```python
import sys, math
from asmlib import Asm, v, a_, s, fhex

L, D, NM, F = 2048, 448, 256, 1792
ZX  = 0x0000000
KR  = 0x0380000
X1T = 0x0540000
MOD = 0x0700000
WD  = 0x0710000
WP  = 0x08A0000
HID = 0x0C00000
WSZ = 0x1300000
LOG2E = 1.4426950408889634
P = dict(CH=2, g1map='2x14', RD=12, PRE=20)

def srd(a, sd, sb, nbytes):
    a(f's_mov_b32 s{sd}, s{sb}')
    a(f's_mov_b32 s{sd+1}, s{sb+1}')
    a(f's_mov_b32 s{sd+2}, {hex(nbytes)}')
    a(f's_mov_b32 s{sd+3}, 0x20000')

def cmul(a, d, x, e, t):
    a(f'v_pk_mul_f32 {v(t,2)}, {v(x,2)}, {v(e,2)} op_sel:[0,0] op_sel_hi:[1,0]')
    a(f'v_pk_fma_f32 {v(d,2)}, {v(x,2)}, {v(e,2)}, {v(t,2)} op_sel:[1,1,0] op_sel_hi:[0,1,1] neg_lo:[1,0,0]')

def rb1(a, r):
    a(f'v_cvt_pk_bf16_f32 v{r}, v{r}, v{r}')
    a(f'v_and_b32 v{r}, 0xffff0000, v{r}')

def rb2(a, r0, r1, t):
    a(f'v_cvt_pk_bf16_f32 v{t}, v{r0}, v{r1}')
    a(f'v_lshlrev_b32 v{r0}, 16, v{t}')
    a(f'v_and_b32 v{r1}, 0xffff0000, v{t}')

N_KG, N_LN, N_MOD, N_WD = 448, 128, 84, 56
K1_LDS = 39040
def k1(a):
    nm = 'k1_kernel'
    a.begin_kernel(nm)
    tot = N_KG + N_LN + N_MOD + N_WD
    a(f's_cmp_ge_u32 s2, {tot}')
    a('s_cbranch_scc1 k1_end')
    a('s_load_dwordx2 s[4:5], s[0:1], 136')
    a(f's_cmp_ge_u32 s2, {N_KG + N_LN + N_MOD}')
    a('s_cbranch_scc1 k1_wd')
    a(f's_cmp_ge_u32 s2, {N_KG + N_LN}')
    a('s_cbranch_scc1 k1_mod')
    a(f's_cmp_ge_u32 s2, {N_KG}')
    a('s_cbranch_scc1 k1_ln')
    FT = 34816
    a('s_load_dwordx16 s[8:23], s[0:1], 8')
    a('s_lshl_b32 s3, s2, 9')
    a('v_lshl_add_u32 v1, v0, 1, s3')
    a('s_lshl_b32 s6, s2, 1')
    a('v_mov_b32 v9, s6')
    a('s_waitcnt lgkmcnt(0)')
    for i in range(6):
        a(f'global_load_ushort v{2+i}, v1, s[{8+2*i}:{9+2*i}]')
    a('global_load_ushort v8, v9, s[20:21]')
    a('v_lshlrev_b32 v24, 3, v0')
    for e in range(0, 8, 2):
        a(f'v_sub_u32 v25, {2047-e}, v24')
        a(f'v_sub_u32 v26, {2047-e-1}, v24')
        a('v_cvt_f32_u32 v25, v25')
        a('v_cvt_f32_u32 v26, v26')
        rb2(a, 25, 26, 27)
        a('v_cvt_u32_f32 v25, v25')
        a('v_cvt_u32_f32 v26, v26')
        for (u, dst) in ((25, 10+e), (26, 11+e)):
            a(f'v_and_b32 v28, 0xf00, v{u}')
            a(f'v_and_b32 v29, 7, v{u}')
            a(f'v_lshrrev_b32 v30, 2, v{u}')
            a('v_and_b32 v30, 0x3e, v30')
            a('v_lshl_or_b32 v28, v28, 1, v30')
            a(f'v_lshl_or_b32 v{dst}, v29, 6, v28')
    a('v_lshrrev_b32 v24, 6, v0')
    a('v_mul_u32_u24 v24, 8704, v24')
    a('v_and_b32 v25, 63, v0')
    a('v_lshl_add_u32 v20, v25, 2, v24')
    a('v_and_b32 v26, 31, v0')
    a('v_bfe_u32 v27, v0, 5, 1')
    a('v_mul_u32_u24 v28, 272, v26')
    a('v_lshl_add_u32 v28, v27, 4, v28')
    a('v_add_u32 v21, v28, v24')
    a('v_mul_u32_u24 v28, 144, v26')
    a('v_lshl_add_u32 v28, v27, 4, v28')
    a('v_add_u32 v22, v28, v24')
    a('v_lshrrev_b32 v26, 3, v0')
    a('v_and_b32 v27, 7, v0')
    a('v_mul_u32_u24 v28, 144, v26')
    a('v_lshl_add_u32 v18, v27, 4, v28')
    a('v_lshlrev_b32 v28, 1, v26'); a('v_subrev_u32 v28, 8, v28')
    a('v_lshlrev_b32 v29, 2, v26'); a('v_subrev_u32 v29, 32, v29')
    a('v_lshlrev_b32 v30, 3, v26'); a('v_subrev_u32 v30, 96, v30')
    a('v_max3_i32 v28, v26, v28, v29')
    a('v_max_i32 v28, v28, v30')
    a('v_min_i32 v28, 65, v28')
    a('v_lshlrev_b32 v28, 6, v28')
    a('v_lshl_add_u32 v19, v27, 3, v28')
    a('s_lshl_b32 s3, s2, 12')
    a(f's_add_u32 s3, s3, {KR}')
    a('v_lshl_add_u32 v23, v0, 4, s3')
    a('s_waitcnt vmcnt(0)')
    for i in range(7):
        a(f'v_lshlrev_b32 v{2+i}, 16, v{2+i}')
    Lhi = LOG2E
    import struct
    Lf = struct.unpack('<f', struct.pack('<f', LOG2E))[0]
    Llo = LOG2E - Lf
    a(f's_mov_b32 s24, {fhex(Lf)}')
    a(f's_mov_b32 s25, {fhex(Llo)}')
    a(f's_mov_b32 s26, {fhex(math.log(2.0))}')
    a('v_mul_f32 v24, s24, v8')
    a('v_fma_f32 v25, v8, s24, -v24')
    a('v_fma_f32 v25, v8, s25, v25')
    a('v_exp_f32 v24, v24')
    a('v_mul_f32 v25, s26, v25')
    a('v_fma_f32 v8, v24, v25, v24')
    rb1(a, 8)
    a('v_mul_f32 v2, v8, v2')
    a('v_mul_f32 v3, v8, v3')
    a('v_mul_f32 v4, v8, v4')
    a('v_mul_f32 v5, v8, v5')
    a('v_mul_f32 v2, s24, v2')
    a('v_mul_f32 v3, 0.15915494309189532, v3')
    def direct(dst, mult, conj):
        if mult == 1:
            a('v_exp_f32 v24, v2'); a('v_fract_f32 v25, v3')
        else:
            a(f'v_mul_f32 v24, {fhex(float(mult))}, v2')
            a(f'v_mul_f32 v25, {fhex(float(mult))}, v3')
            a('v_exp_f32 v24, v24'); a('v_fract_f32 v25, v25')
        a('v_cos_f32 v26, v25')
        a('v_sin_f32 v27, v25')
        a(f'v_mul_f32 v{dst}, v24, v26')
        if conj: a(f'v_mul_f32 v{dst+1}, -v24, v27')
        else: a(f'v_mul_f32 v{dst+1}, v24, v27')
    direct(34, 8, False)
    E1, E256 = 58, 60
    direct(E1, 1, True)
    direct(E256, 256, True)
    a('v_mov_b32 v32, 1.0'); a('v_mov_b32 v33, 0')
    cmul(a, 36, 34, 34, 50)
    cmul(a, 38, 36, 34, 52)
    cmul(a, 48, 36, 36, 54)
    cur, nxt = 32, 40
    for blk in range(8):
        for c in range(4):
            a(f'v_cvt_pk_bf16_f32 v{28+c}, v{cur+2*c}, v{cur+2*c+1}')
        if blk < 7:
            for c in range(4):
                cmul(a, nxt+2*c, cur+2*c, 48, 50+2*c)
        for c in range(4):
            a(f'ds_write_b32 v20, v{28+c} offset:{(blk*4+c)*272}')
        cur, nxt = nxt, cur
    for st in range(8):
        a(f'ds_read_b128 {v(64+4*st,4)}, v21 offset:{32*st}')
    X = lambda i: 96 + 0
    xr = {}
    pool = list(range(32, 48, 2)) + [96, 98, 100, 102, 104, 106]
    def newx(i):
        xr[i] = pool.pop(0); return xr[i]
    def freex(i): pool.append(xr.pop(i))
    def wr(i):
        t = 28 + (i & 3)
        a(f'v_cvt_pk_bf16_f32 v{t}, v{xr[i]}, v{xr[i]+1}')
        a(f'ds_write_b32 v20, v{t} offset:{i*272}')
    x0 = newx(0)
    a(f'v_mul_f32 v{x0}, v6, v4')
    a(f'v_mul_f32 v{x0+1}, -v6, v5')
    a(f'v_fma_f32 v{x0}, -v7, v5, v{x0}')
    a(f'v_fma_f32 v{x0+1}, -v7, v4, v{x0+1}')
    E2 = 62
    cmul(a, E2, E1, E1, 50)
    cmul(a, newx(1), xr[0], E1, 52)
    tt = [50, 52, 54, 56]
    k = 0
    for i in range(2, 8):
        cmul(a, newx(i), xr[i-2], E2, tt[k & 3]); k += 1
    for i in range(8): wr(i)
    for i in (1, 3, 5, 7): freex(i)
    for j, src in enumerate((0, 2, 4, 6)):
        cmul(a, newx(8+j), xr[src], E256, tt[j])
    for i in (0, 2, 4, 6): freex(i)
    cmul(a, newx(12), xr[8], E256, 50)
    cmul(a, newx(13), xr[10], E256, 52)
    for i in range(8, 12): wr(i)
    cmul(a, newx(14), xr[12], E256, 54)
    cmul(a, newx(15), xr[13], E256, 56)
    for i in range(8, 12): freex(i)
    wr(12); wr(13)
    cmul(a, newx(16), xr[14], E256, 50)
    wr(14); wr(15)
    for i in range(17, 21):
        cmul(a, newx(i), xr[i-1], E256, tt[i & 3])
        wr(i-1)
    wr(20)
    for st in range(8):
        a(f'ds_read_b128 {v(32+4*st,4)}, v21 offset:{32*st}')
    ACC = 96
    for st in range(8):
        a(f's_waitcnt lgkmcnt({7-st})')
        a(f'v_mfma_f32_32x32x16_bf16 {v(ACC,16)}, {v(64+4*st,4)}, {v(32+4*st,4)}, {"0" if st == 0 else v(ACC,16)}')
    for q in range(4):
        a(f'ds_write_b128 v22, {v(ACC+4*q,4)} offset:{32*q}')
    a('s_waitcnt lgkmcnt(0)')
    a('s_barrier')
    for w in range(4):
        a(f'ds_read_b128 {v(32+4*w,4)}, v18 offset:{8704*w}')
    a('s_waitcnt lgkmcnt(2)')
    for e in range(4): a(f'v_add_f32 v{32+e}, v{32+e}, v{36+e}')
    a('s_waitcnt lgkmcnt(0)')
    for e in range(4): a(f'v_add_f32 v{40+e}, v{40+e}, v{44+e}')
    for e in range(4): a(f'v_add_f32 v{32+e}, v{32+e}, v{40+e}')
    a('v_cvt_pk_bf16_f32 v36, v32, v33')
    a('v_cvt_pk_bf16_f32 v37, v34, v35')
    a(f'ds_write_b64 v19, v[36:37] offset:{FT}')
    a('s_waitcnt lgkmcnt(0)')
    a('s_barrier')
    for e in range(8):
        a(f'ds_read_u16 v{40+e}, v{10+e} offset:{FT}')
    a('s_waitcnt lgkmcnt(0)')
    for e in range(4):
        a(f'v_lshl_or_b32 v{32+e}, v{41+2*e}, 16, v{40+2*e}')
    a('global_store_dwordx4 v23, v[32:35], s[4:5]')
    a('s_endpgm')

    a.label('k1_ln'); a.hist = []
    a('s_load_dwordx2 s[8:9], s[0:1], 0')
    a(f's_sub_u32 s3, s2, {N_KG}')
    a('s_lshl_b32 s3, s3, 4')
    a('v_lshrrev_b32 v1, 4, v0')
    a('v_and_b32 v2, 15, v0')
    a('v_add_u32 v3, s3, v1')
    a('v_mul_u32_u24 v3, 896, v3')
    a('v_lshl_add_u32 v3, v2, 3, v3')
    a('s_waitcnt lgkmcnt(0)')
    for j in range(7):
        a(f'global_load_dwordx2 {v(10+2*j,2)}, v3, s[8:9] offset:{128*j}')
    a('v_mul_u32_u24 v4, 272, v2')
    a('v_lshl_add_u32 v4, v1, 2, v4')
    a('v_lshrrev_b32 v5, 2, v0')
    a('v_and_b32 v6, 3, v0')
    a('v_add_u32 v7, v1, v6')
    a('v_lshlrev_b32 v7, 4, v7')
    a('v_lshl_add_u32 v7, v5, 6, v7')
    a('s_lshl_b32 s6, s3, 2')
    a('v_lshlrev_b32 v8, 13, v5')
    a('v_lshl_add_u32 v8, v6, 4, v8')
    a('v_add_u32 v8, s6, v8')
    srd(a, 12, 4, WSZ)
    XV = 32
    for j in range(7):
        a(f's_waitcnt vmcnt({6-j})')
        for e2 in range(2):
            a(f'v_lshlrev_b32 v{XV+4*j+2*e2}, 16, v{10+2*j+e2}')
            a(f'v_and_b32 v{XV+4*j+2*e2+1}, 0xffff0000, v{10+2*j+e2}')
    for c in range(4):
        a(f'v_add_f32 v{24+c}, v{XV+c}, v{XV+4+c}')
    for j in range(2, 7):
        for c in range(4):
            a(f'v_add_f32 v{24+c}, v{24+c}, v{XV+4*j+c}')
    a('v_add_f32 v24, v24, v25'); a('v_add_f32 v26, v26, v27'); a('v_add_f32 v24, v24, v26')
    def allred16(r):
        for m in ('quad_perm:[1,0,3,2]', 'quad_perm:[2,3,0,1]', 'row_half_mirror', 'row_mirror'):
            a(f'v_add_f32_dpp v{r}, v{r}, v{r} {m} row_mask:0xf bank_mask:0xf')
    allred16(24)
    a(f'v_mul_f32 v24, {fhex(1.0/448)}, v24')
    for i in range(28):
        a(f'v_sub_f32 v{64+i}, v{XV+i}, v24')
    for c in range(4):
        a(f'v_mul_f32 v{26+c}, v{64+c}, v{64+c}')
    for i in range(4, 28):
        a(f'v_fmac_f32 v{26+(i&3)}, v{64+i}, v{64+i}')
    a('v_add_f32 v26, v26, v27'); a('v_add_f32 v28, v28, v29'); a('v_add_f32 v26, v26, v28')
    allred16(26)
    a(f'v_mul_f32 v26, {fhex(1.0/448)}, v26')
    rb2(a, 24, 26, 27)
    a(f'v_add_f32 v26, {fhex(1e-5)}, v26')
    rb1(a, 26)
    a('v_sqrt_f32 v26, v26')
    rb1(a, 26)
    a('v_rcp_f32 v26, v26')
    for i in range(0, 28, 2):
        a(f'v_sub_f32 v{64+i}, v{XV+i}, v24')
        a(f'v_sub_f32 v{65+i}, v{XV+i+1}, v24')
    for i in range(0, 28, 2):
        rb2(a, 64+i, 65+i, 28 + ((i >> 1) & 3))
    for i in range(28):
        a(f'v_mul_f32 v{64+i}, v{64+i}, v26')
    for i in range(28):
        a(f'v_cvt_pk_bf16_f32 v{64+i}, v{64+i}, v{XV+i}')
        a(f'ds_write_b32 v4, v{64+i} offset:{(i>>2)*4352 + (i&3)*64}')
    a('s_waitcnt lgkmcnt(0)')
    a('s_barrier')
    for i in range(7):
        a(f'ds_read_b128 {v(32+4*i,4)}, v7 offset:{4352*i}')
    for i in range(7):
        a(f's_mov_b32 s7, {hex(ZX + 0x80000*i)}')
        a(f's_waitcnt lgkmcnt({6-i})')
        a(f'buffer_store_dwordx4 {v(32+4*i,4)}, v8, s[12:15], s7 offen')
    a('s_endpgm')

    a.label('k1_mod'); a.hist = []
    a('s_load_dwordx4 s[8:11], s[0:1], 104')
    a(f's_sub_u32 s3, s2, {N_KG + N_LN}')
    a('s_lshl_b32 s6, s3, 6')
    a('v_and_b32 v1, 3, v0')
    a('v_lshrrev_b32 v2, 2, v0')
    a('v_mul_u32_u24 v3, 5376, v2')
    a('v_lshl_add_u32 v3, v1, 4, v3')
    a('v_add_u32 v3, s6, v3')
    a('v_lshlrev_b32 v4, 1, v2')
    a('s_waitcnt lgkmcnt(0)')
    srd(a, 12, 10, 448*2688*2)
    for i in range(7):
        a(f'global_load_ushort v{10+i}, v4, s[8:9] offset:{128*i}')
    for i in range(7):
        a(f's_mov_b32 s7, {344064*i}')
        a(f'buffer_load_dwordx4 {v(32+4*i,4)}, v3, s[12:15], s7 offen')
    a('v_lshrrev_b32 v5, 4, v0')
    a('v_lshlrev_b32 v5, 7, v5')
    a('v_lshl_add_u32 v5, v1, 5, v5')
    a('v_and_b32 v6, 31, v0')
    a('v_lshlrev_b32 v6, 2, v6')
    a('s_waitcnt vmcnt(7)')
    for i in range(7):
        a(f'v_lshlrev_b32 v{10+i}, 16, v{10+i}')
    for i in range(7):
        a(f'v_mul_f32 v{20+i}, {fhex(-LOG2E)}, v{10+i}')
    for i in range(7): a(f'v_exp_f32 v{20+i}, v{20+i}')
    for i in range(7): a(f'v_add_f32 v{20+i}, 1.0, v{20+i}')
    for i in range(7): a(f'v_rcp_f32 v{20+i}, v{20+i}')
    for i in range(7): a(f'v_mul_f32 v{10+i}, v{10+i}, v{20+i}')
    for i in range(7): rb1(a, 10+i)
    ACC = 64
    for i in range(7):
        a(f's_waitcnt vmcnt({6-i})')
        for j in range(4):
            a(f'v_lshlrev_b32 v{20+2*j}, 16, v{32+4*i+j}')
            a(f'v_and_b32 v{21+2*j}, 0xffff0000, v{32+4*i+j}')
        for j in range(8):
            if i == 0: a(f'v_mul_f32 v{ACC+j}, v{20+j}, v{10+i}')
            else: a(f'v_fmac_f32 v{ACC+j}, v{20+j}, v{10+i}')
    for m in ('row_ror:4', 'row_ror:8'):
        for j in range(8):
            a(f'v_add_f32_dpp v{ACC+j}, v{ACC+j}, v{ACC+j} {m} row_mask:0xf bank_mask:0xf')
    a(f'ds_write_b128 v5, {v(ACC,4)}')
    a(f'ds_write_b128 v5, {v(ACC+4,4)} offset:16')
    a('s_waitcnt lgkmcnt(0)')
    a('s_barrier')
    a('v_cmp_gt_u32 vcc, 32, v0')
    a('s_and_saveexec_b64 s[16:17], vcc')
    a('s_cbranch_execz k1_end')
    for i in range(16):
        a(f'ds_read_b32 v{32+i}, v6 offset:{128*i}')
    a('s_lshl_b32 s6, s3, 7')
    a(f's_add_u32 s6, s6, {MOD}')
    a('v_add_u32 v7, s6, v6')
    a('s_waitcnt lgkmcnt(0)')
    for st in (8, 4, 2, 1):
        for i in range(st):
            a(f'v_add_f32 v{32+i}, v{32+i}, v{32+st+i}')
    rb1(a, 32)
    a('global_store_dword v7, v32, s[4:5]')
    a('s_endpgm')

    a.label('k1_wd'); a.hist = []
    a('s_load_dwordx2 s[8:9], s[0:1], 96')
    a(f's_sub_u32 s3, s2, {N_KG + N_LN + N_MOD}')
    a('v_lshrrev_b32 v1, 6, v0')
    a('v_and_b32 v2, 63, v0')
    a('v_readfirstlane_b32 s20, v1')
    a('v_lshlrev_b32 v3, 4, v2')
    a('s_mul_i32 s21, s20, 7168')
    a('s_mul_i32 s6, s3, 28672')
    a('s_add_u32 s6, s6, s21')
    a('s_waitcnt lgkmcnt(0)')
    srd(a, 12, 8, 1792*448*2)
    srd(a, 16, 4, WSZ)
    for i in range(7):
        if i % 4 == 0:
            a(f's_add_u32 m0, s21, {i*1024}')
            a(f's_add_u32 s7, s6, {i*1024}')
        a(f'buffer_load_dwordx4 v3, s[12:15], s7 offen offset:{(i%4)*1024} lds')
    a('v_bfe_u32 v4, v0, 5, 1')
    a('v_bfe_u32 v5, v0, 2, 2')
    a('v_lshl_add_u32 v4, v4, 2, v5')
    a('v_and_b32 v5, 1, v1')
    a('v_lshl_add_u32 v4, v5, 4, v4')
    a('v_mul_u32_u24 v4, 896, v4')
    a('v_bfe_u32 v6, v0, 4, 1')
    a('v_and_b32 v7, 3, v0')
    a('v_lshl_add_u32 v4, v6, 5, v4')
    a('v_lshl_add_u32 v4, v7, 3, v4')
    a('v_lshrrev_b32 v6, 1, v1')
    a('v_mul_u32_u24 v7, 448, v6')
    a('v_add_u32 v4, v4, v7')
    a('v_mul_u32_u24 v7, 784, v6')
    a('v_add_u32 v7, v7, v5')
    a('v_lshl_add_u32 v8, v7, 10, v3')
    a('s_lshl_b32 s22, s3, 11')
    a(f's_add_u32 s22, s22, {WD}')
    a('s_waitcnt vmcnt(0)')
    a('s_barrier')
    for i in range(7):
        a(f'ds_read_b64_tr_b16 {v(32+4*i,2)}, v4 offset:{64*i}')
        a(f'ds_read_b64_tr_b16 {v(34+4*i,2)}, v4 offset:{64*i+7168}')
    for i in range(7):
        a(f's_add_u32 s7, s22, {i*112*1024}')
        a(f's_waitcnt lgkmcnt({12-2*i})')
        a(f'buffer_store_dwordx4 {v(32+4*i,4)}, v8, s[16:19], s7 offen')
    a.label('k1_end')
    a('s_endpgm')
    a.end_kernel(nm, denorm=False)
    a.launch(nm, tot, 256, K1_LDS)

N_CV, N_PP = 448, 112
UB = 33280
K2_LDS = UB + 96*80
def k2(a):
    nm = 'k2_kernel'
    a.begin_kernel(nm)
    tot = N_CV + N_PP
    a(f's_cmp_ge_u32 s2, {tot}')
    a('s_cbranch_scc1 k2_end')
    a('s_load_dwordx2 s[4:5], s[0:1], 136')
    a(f's_cmp_ge_u32 s2, {N_CV}')
    a('s_cbranch_scc1 k2_prep')
    a('s_load_dwordx2 s[8:9], s[0:1], 64')
    a('s_lshl_b32 s3, s2, 13')
    a('v_lshl_add_u32 v1, v0, 5, s3')
    a('v_lshlrev_b32 v2, 4, v0')
    a('s_lshl_b32 s6, s2, 12')
    a('s_lshl_b32 s7, s2, 2')
    a(f's_add_u32 s7, s7, {MOD}')
    a('s_waitcnt lgkmcnt(0)')
    a('global_load_dwordx4 v[8:11], v1, s[4:5]')
    a('global_load_dwordx4 v[12:15], v1, s[4:5] offset:16')
    a(f's_add_u32 s10, s6, {KR}')
    a('s_add_u32 s12, s4, s10')
    a('s_addc_u32 s13, s5, 0')
    a('s_mov_b32 s14, 4096')
    a('s_mov_b32 s15, 0x20000')
    a('buffer_load_dwordx4 v[16:19], v2, s[12:15], 0 offen')
    a('buffer_load_dwordx4 v[20:23], v2, s[12:15], 0 offen offset:16')
    a('s_add_u32 s16, s4, s7')
    a('s_addc_u32 s17, s5, 0')
    a('s_load_dword s20, s[16:17], 0')
    a(f's_load_dword s21, s[16:17], {448*4}')
    a(f's_load_dword s22, s[16:17], {2*448*4}')
    a('s_lshl_b32 s10, s2, 1')
    a('s_and_b32 s11, s10, 0xfffffffc')
    a('s_add_u32 s8, s8, s11')
    a('s_addc_u32 s9, s9, 0')
    a('s_load_dword s23, s[8:9], 0')
    for i in range(4): a(f'v_mov_b32 v{24+i}, 0')
    a('v_cmp_gt_u32 vcc, 160, v0')
    a('s_and_saveexec_b64 s[18:19], vcc')
    a(f'ds_write_b128 v2, v[24:27] offset:{UB}')
    a('s_mov_b64 exec, s[18:19]')
    a('v_and_b32 v3, 7, v0')
    a('v_mul_u32_u24 v3, 4160, v3')
    a('v_lshrrev_b32 v4, 3, v0')
    a('v_lshl_add_u32 v3, v4, 4, v3')
    a('v_cmp_gt_u32 vcc, 24, v0')
    a('s_and_saveexec_b64 s[18:19], vcc')
    a('ds_write_b128 v3, v[24:27] offset:4096')
    a('s_mov_b64 exec, s[18:19]')
    a('v_lshrrev_b32 v3, 2, v0')
    a('v_mul_u32_u24 v3, 80, v3')
    a('v_and_b32 v4, 3, v0')
    a('v_lshl_add_u32 v3, v4, 4, v3')
    a('v_lshrrev_b32 v28, 6, v0')
    a('v_and_b32 v29, 7, v0')
    a('v_bfe_u32 v30, v0, 3, 2')
    a('v_bfe_u32 v31, v0, 5, 1')
    a('v_mul_u32_u24 v4, 4160, v29')
    a('v_sub_u32 v5, v31, v30')
    a('v_lshl_add_u32 v4, v5, 4, v4')
    a('v_lshlrev_b32 v5, 9, v28')
    a('v_sub_u32 v4, v4, v5')
    a(f'v_add_u32 v4, {4080 - 32*78}, v4')
    a('v_and_b32 v29, 31, v0')
    a('v_lshlrev_b32 v5, 3, v28')
    a('v_sub_u32 v5, v29, v5')
    a('v_add_u32 v5, 25, v5')
    a('v_mul_u32_u24 v5, 80, v5')
    a('v_lshl_add_u32 v5, v31, 4, v5')
    a('v_bfe_u32 v30, v0, 1, 2')
    a('v_and_b32 v6, 1, v0')
    a('v_lshl_or_b32 v30, v6, 2, v30')
    a('v_xor_b32 v30, v30, v31')
    a('v_lshlrev_b32 v6, 13, v28')
    a('v_lshl_add_u32 v6, v29, 7, v6')
    PW = 96
    for q in range(4):
        a(f'v_xor_b32 v7, {2*q}, v30')
        a(f'v_lshl_add_u32 v{PW+q}, v7, 4, v6')
    a('v_bfe_u32 v30, v0, 3, 2')
    a('v_bfe_u32 v6, v0, 2, 1')
    a('v_lshl_or_b32 v30, v6, 2, v30')
    a('v_and_b32 v6, 3, v0')
    a('v_lshlrev_b32 v6, 1, v6')
    a('v_xor_b32 v30, v30, v6')
    a('v_lshrrev_b32 v6, 2, v0')
    a('v_lshlrev_b32 v6, 7, v6')
    a('v_lshl_add_u32 v100, v30, 4, v6')
    a('v_xor_b32 v30, 1, v30')
    a('v_lshl_add_u32 v101, v30, 4, v6')
    a(f's_add_u32 s6, s6, {X1T}')
    a('v_add_u32 v102, s6, v2')
    a('s_waitcnt lgkmcnt(0)')
    a('v_add_f32 v6, 1.0, s21') if False else a('v_mov_b32 v6, s21')
    a('v_add_f32 v6, 1.0, v6')
    rb1(a, 6)
    a('s_bitcmp1_b32 s2, 0')
    a('s_lshl_b32 s24, s23, 16')
    a('s_and_b32 s25, s23, 0xffff0000')
    a('s_bitcmp1_b32 s2, 0')
    a('s_cselect_b32 s23, s25, s24')
    a('s_waitcnt vmcnt(2)')
    H = 104
    for e in range(8):
        a(f'v_lshlrev_b32 v{32+e}, 16, v{8+e}')
    for e in range(8):
        a(f'v_mul_f32 v{32+e}, v{32+e}, v6')
    for e in range(0, 8, 2):
        rb2(a, 32+e, 33+e, 40 + (e >> 1))
    for e in range(8):
        a(f'v_add_f32 v{32+e}, s20, v{32+e}')
    for e in range(4):
        a(f'v_cvt_pk_bf16_f32 v{H+e}, v{32+2*e}, v{33+2*e}')
    a(f'ds_write_b128 v3, {v(H,4)} offset:{UB+2560}')
    a('s_waitcnt vmcnt(0)')
    G = 16; G1 = 32; O = 40; O1 = 48
    a(f'ds_write_b128 v2, {v(G,4)} offset:{7*4160}')
    a(f'ds_write_b128 v2, {v(G+2,4)} offset:{3*4160}')
    for k in range(6): a(f'v_mov_b32 v{G1+k}, v{G+1+k}')
    a(f'ds_write_b128 v2, {v(G1,4)} offset:{5*4160}')
    a(f'ds_write_b128 v2, {v(G1+2,4)} offset:{1*4160}')
    for k in range(6): a(f'v_alignbit_b32 v{O+k}, v{G+k+1}, v{G+k}, 16')
    a(f'ds_write_b128 v2, {v(O,4)} offset:{6*4160}')
    a(f'ds_write_b128 v2, {v(O+2,4)} offset:{2*4160}')
    for k in range(6): a(f'v_alignbit_b32 v{O1+k}, v{G+k+2}, v{G+k+1}, 16')
    a(f'ds_write_b128 v2, {v(O1,4)} offset:{4*4160}')
    a(f'ds_write_b128 v2, {v(O1+2,4)} offset:{0*4160}')
    a('s_waitcnt lgkmcnt(0)')
    a('s_barrier')
    A0, A1 = 64, 80
    FB = 16
    trip = [(dl, kk) for dl in range(8) for kk in range(2)]
    def loads(n):
        dl, kk = trip[n]
        qp = 2*dl - kk
        b = FB + (n % 3)*16
        oa = 32*(14 - qp)
        ob = UB + (7 - dl)*80 + 32*kk
        a(f'ds_read_b128 {v(b,4)}, v4 offset:{oa+2048}')
        a(f'ds_read_b128 {v(b+4,4)}, v5 offset:{ob}')
        a(f'ds_read_b128 {v(b+8,4)}, v5 offset:{ob+2560}')
        a(f'ds_read_b128 {v(b+12,4)}, v4 offset:{oa}')
    loads(0); loads(1)
    for n in range(16):
        if n + 2 < 16: loads(n + 2)
        rem = min(2, 15 - n) * 4
        b = FB + (n % 3)*16
        a(f's_waitcnt lgkmcnt({rem+2})')
        a(f'v_mfma_f32_32x32x16_bf16 {v(A0,16)}, {v(b,4)}, {v(b+4,4)}, {"0" if n == 0 else v(A0,16)}')
        a(f's_waitcnt lgkmcnt({rem+1})')
        a(f'v_mfma_f32_32x32x16_bf16 {v(A1,16)}, {v(b,4)}, {v(b+8,4)}, {"0" if n == 0 else v(A1,16)}')
        a(f's_waitcnt lgkmcnt({rem})')
        a(f'v_mfma_f32_32x32x16_bf16 {v(A1,16)}, {v(b+12,4)}, {v(b+4,4)}, {v(A1,16)}')
    a('s_barrier')
    for c, A in enumerate((A0, A1)):
        for q in range(4):
            a(f'ds_write_b128 v{PW+q}, {v(A+4*q,4)} offset:{4096*c}')
    a('s_waitcnt lgkmcnt(0)')
    a('s_barrier')
    for w in range(4):
        a(f'ds_read_b128 {v(16+8*w,4)}, v100 offset:{8192*w}')
        a(f'ds_read_b128 {v(20+8*w,4)}, v101 offset:{8192*w}')
    for e in range(4):
        a(f'v_lshlrev_b32 v{48+2*e}, 16, v{H+e}')
        a(f'v_and_b32 v{49+2*e}, 0xffff0000, v{H+e}')
    for e in range(8): a(f'v_mul_f32 v{48+e}, s23, v{48+e}')
    for e in range(0, 8, 2): rb2(a, 48+e, 49+e, 56 + (e >> 1))
    for e in range(8): a(f'v_and_b32 v{8+e}, 0xffff0000, v{8+e}')
    a('s_waitcnt lgkmcnt(4)')
    for e in range(8): a(f'v_add_f32 v{16+e}, v{16+e}, v{24+e}')
    a('s_waitcnt lgkmcnt(0)')
    for e in range(8): a(f'v_add_f32 v{32+e}, v{32+e}, v{40+e}')
    for e in range(8): a(f'v_add_f32 v{16+e}, v{16+e}, v{32+e}')
    for e in range(0, 8, 2): rb2(a, 16+e, 17+e, 56 + (e >> 1))
    for e in range(8): a(f'v_add_f32 v{16+e}, v{16+e}, v{48+e}')
    for e in range(0, 8, 2): rb2(a, 16+e, 17+e, 56 + (e >> 1))
    for e in range(8): a(f'v_mul_f32 v{16+e}, s22, v{16+e}')
    for e in range(0, 8, 2): rb2(a, 16+e, 17+e, 56 + (e >> 1))
    for e in range(8): a(f'v_add_f32 v{16+e}, v{16+e}, v{8+e}')
    for e in range(4): a(f'v_cvt_pk_bf16_f32 v{24+e}, v{16+2*e}, v{17+2*e}')
    a('global_store_dwordx4 v102, v[24:27], s[4:5]')
    a('s_endpgm')

    a.label('k2_prep'); a.hist = []
    SC = 28672
    a('s_load_dwordx4 s[8:11], s[0:1], 80')
    a(f's_sub_u32 s3, s2, {N_CV}')
    a('s_lshr_b32 s6, s3, 1')
    a('s_lshl_b32 s6, s6, 6')
    a('v_and_b32 v1, 3, v0')
    a('v_lshrrev_b32 v2, 2, v0')
    a('v_mul_u32_u24 v3, 3584, v2')
    a('v_lshl_add_u32 v3, v1, 4, v3')
    a('v_add_u32 v3, s6, v3')
    a('v_lshlrev_b32 v4, 2, v2')
    a('s_waitcnt lgkmcnt(0)')
    a('s_bitcmp1_b32 s3, 0')
    a('s_cselect_b32 s12, s10, s8')
    a('s_cselect_b32 s13, s11, s9')
    a(f's_mov_b32 s14, {448*1792*2}')
    a('s_mov_b32 s15, 0x20000')
    srd(a, 16, 4, WSZ)
    a(f's_mov_b32 s20, {MOD + 3*448*4}')
    a(f's_mov_b32 s21, {MOD + 4*448*4}')
    for i in range(7):
        a(f'buffer_load_dword v{10+i}, v4, s[16:19], s21 offen offset:{256*i}')
    for i in range(7):
        a(f'buffer_load_dword v{17+i}, v4, s[16:19], s20 offen offset:{256*i}')
    for i in range(7):
        a(f's_mov_b32 s7, {229376*i}')
        a(f'buffer_load_dwordx4 {v(32+4*i,4)}, v3, s[12:15], s7 offen')
    a('v_lshlrev_b32 v5, 4, v0')
    a('v_lshrrev_b32 v6, 4, v0')
    a('v_lshlrev_b32 v6, 8, v6')
    a('v_lshl_add_u32 v6, v1, 5, v6')
    a('v_lshrrev_b32 v24, 6, v0')
    a('v_bfe_u32 v7, v0, 5, 1')
    a('v_bfe_u32 v8, v0, 2, 2')
    a('v_lshl_add_u32 v7, v7, 3, v8')
    a('v_lshlrev_b32 v7, 6, v7')
    a('v_bfe_u32 v8, v0, 4, 1')
    a('v_lshl_add_u32 v7, v8, 5, v7')
    a('v_lshl_add_u32 v7, v1, 3, v7')
    a('v_mul_u32_u24 v8, 7168, v24')
    a('v_add_u32 v7, v7, v8')
    a('v_and_b32 v25, 63, v0')
    a('v_lshl_add_u32 v8, v25, 4, v8')
    a('v_lshlrev_b32 v9, 2, v25')
    a('v_readfirstlane_b32 s24, v24')
    a('s_mul_i32 s22, s3, 29696')
    a(f's_add_u32 s22, s22, {WP}')
    a('s_waitcnt vmcnt(14)')
    for i in range(7): a(f'v_add_f32 v{10+i}, 1.0, v{10+i}')
    for i in range(7): rb1(a, 10+i)
    S, B = 64, 72
    for i in range(7):
        a(f's_waitcnt vmcnt({6-i})')
        for j in range(4):
            a(f'v_lshlrev_b32 v{80+2*j}, 16, v{32+4*i+j}')
            a(f'v_and_b32 v{81+2*j}, 0xffff0000, v{32+4*i+j}')
        for j in range(8):
            if i == 0: a(f'v_mul_f32 v{B+j}, v{80+j}, v{17+i}')
            else: a(f'v_fmac_f32 v{B+j}, v{80+j}, v{17+i}')
        for j in range(8):
            a(f'v_mul_f32 v{80+j}, v{80+j}, v{10+i}')
        for j in range(4):
            a(f'v_cvt_pk_bf16_f32 v{32+4*i+j}, v{80+2*j}, v{81+2*j}')
        a(f'ds_write_b128 v5, {v(32+4*i,4)} offset:{4096*i}')
        for j in range(8):
            if i == 0: a(f'v_mov_b32 v{S+j}, v{80+j}')
            else: a(f'v_add_f32 v{S+j}, v{S+j}, v{80+j}')
    for m in ('row_ror:4', 'row_ror:8'):
        for j in range(16):
            a(f'v_add_f32_dpp v{S+j}, v{S+j}, v{S+j} {m} row_mask:0xf bank_mask:0xf')
    a(f'ds_write_b128 v6, {v(S,4)} offset:{SC}')
    a(f'ds_write_b128 v6, {v(S+4,4)} offset:{SC+16}')
    a(f'ds_write_b128 v6, {v(B,4)} offset:{SC+128}')
    a(f'ds_write_b128 v6, {v(B+4,4)} offset:{SC+144}')
    a('s_waitcnt lgkmcnt(0)')
    a('s_barrier')
    for i in range(7):
        a(f'ds_read_b64_tr_b16 {v(32+4*i,2)}, v7 offset:{1024*i}')
        a(f'ds_read_b64_tr_b16 {v(34+4*i,2)}, v7 offset:{1024*i+256}')
    for i in range(7):
        a(f's_add_u32 s7, s22, {i*1024}')
        a(f's_waitcnt lgkmcnt({12-2*i})')
        a(f'buffer_store_dwordx4 {v(32+4*i,4)}, v8, s[16:19], s7 offen')
    a('s_cmp_lg_u32 s24, 0')
    a('s_cbranch_scc1 k2_end')
    for i in range(16):
        a(f'ds_read_b32 v{80+i}, v9 offset:{SC+256*i}')
    a('v_mov_b32 v65, 0'); a('v_mov_b32 v66, 0'); a('v_mov_b32 v67, 0')
    a(f's_add_u32 s7, s22, {28*1024}')
    a('s_waitcnt lgkmcnt(0)')
    for st in (8, 4, 2, 1):
        for i in range(st):
            a(f'v_add_f32 v{80+i}, v{80+i}, v{80+st+i}')
    a('v_mov_b32 v81, v80')
    rb1(a, 81)
    a('v_sub_f32 v82, v80, v81')
    a('v_cvt_pk_bf16_f32 v64, v81, v82')
    a('buffer_store_dwordx4 v[64:67], v8, s[16:19], s7 offen')
    a.label('k2_end')
    a('s_endpgm')
    a.end_kernel(nm, denorm=False)
    a.launch(nm, tot, 256, K2_LDS)

STAT = 114688
K3_LDS = STAT + 2048
def divmod7(a, sj, sq, sr):
    a(f's_mul_i32 s{sq}, s{sj}, 37')
    a(f's_lshr_b32 s{sq}, s{sq}, 8')
    a(f's_mul_i32 s{sr}, s{sq}, 7')
    a(f's_sub_u32 s{sr}, s{sj}, s{sr}')

def k3(a):
    nm = 'k3_kernel'
    CH, PRE = P['CH'], P['PRE']
    a.begin_kernel(nm)
    a('s_cmp_ge_u32 s2, 224')
    a('s_cbranch_scc1 k3_end')
    a('s_load_dwordx2 s[4:5], s[0:1], 136')
    a('s_and_b32 s6, s2, 7')
    a('s_lshr_b32 s7, s2, 3')
    divmod7(a, 7, 8, 9)
    if P['g1map'] == '2x14':
        a('s_lshr_b32 s12, s8, 1'); a('s_lshl_b32 s10, s6, 1'); a('s_add_u32 s10, s10, s12')
        a('s_and_b32 s11, s8, 1'); a('s_mul_i32 s11, s11, 7'); a('s_add_u32 s11, s11, s9')
    else:
        a('s_lshr_b32 s10, s6, 1'); a('s_lshl_b32 s10, s10, 2'); a('s_add_u32 s10, s10, s8')
        a('s_and_b32 s11, s6, 1'); a('s_mul_i32 s11, s11, 7'); a('s_add_u32 s11, s11, s9')
    a('v_lshrrev_b32 v1, 6, v0')
    a('v_and_b32 v2, 63, v0')
    a('v_readfirstlane_b32 s20, v1')
    a('v_lshrrev_b32 v3, 4, v2')
    a('v_and_b32 v4, 15, v0')
    a('v_lshlrev_b32 v5, 2, v3')
    a('v_xor_b32 v4, v4, v5')
    a('v_lshlrev_b32 v4, 4, v4')
    a('v_lshl_add_u32 v4, v3, 12, v4')
    a('v_lshl_add_u32 v4, v1, 14, v4')
    a('v_lshlrev_b32 v5, 4, v2')
    a('s_lshl_b32 s21, s10, 8')
    a(f's_add_u32 s21, s21, {X1T}')
    a('s_lshl_b32 s22, s11, 2')
    a('s_add_u32 s22, s22, s20')
    a(f's_mul_i32 s23, s22, {2*29*1024}')
    a(f's_add_u32 s23, s23, {WP}')
    a(f's_add_u32 s24, s23, {29*1024}')
    a('s_lshl_b32 s25, s20, 10')
    a('s_waitcnt lgkmcnt(0)')
    srd(a, 16, 4, WSZ)
    nissued = [0]
    order = []
    def issue(ks):
        if ks < 28:
            a(f's_add_u32 m0, s25, {ks*4096}')
            a(f's_add_u32 s26, s21, {ks*65536}')
            a('buffer_load_dwordx4 v4, s[16:19], s26 offen lds')
            order.append(('D', ks))
        if ks % 4 == 0:
            a(f's_add_u32 s27, s23, {ks*1024}')
            a(f's_add_u32 s28, s24, {ks*1024}')
        a(f'buffer_load_dwordx4 {a_(8*ks,4)}, v5, s[16:19], s27 offen offset:{(ks%4)*1024}')
        order.append(('G', ks))
        a(f'buffer_load_dwordx4 {a_(8*ks+4,4)}, v5, s[16:19], s28 offen offset:{(ks%4)*1024}')
        order.append(('U', ks))
    def wait_through(item):
        idx = order.index(item)
        n = len(order) - 1 - idx
        assert n <= 63
        a(f's_waitcnt vmcnt({n})')
    for ks in range(PRE): issue(ks)
    a('v_bfe_u32 v6, v0, 5, 1')
    a('v_bfe_u32 v7, v0, 2, 2')
    a('v_lshl_add_u32 v12, v6, 3, v7')
    a('v_lshlrev_b32 v12, 8, v12')
    a('v_bfe_u32 v13, v0, 4, 1')
    a('v_lshl_add_u32 v12, v13, 5, v12')
    a('v_and_b32 v13, 3, v0')
    a('v_lshl_add_u32 v12, v13, 3, v12')
    a('v_xor_b32 v7, v7, v1')
    for jj in range(4):
        a(f'v_xor_b32 v13, {jj}, v7')
        a(f'v_lshl_add_u32 v{8+jj}, v13, 6, v12')
    XB = 16
    EF = 48
    ACC = 128
    S1, S2 = 64, 66
    T = 68
    for i in range(16): a(f'v_mov_b32 v{EF+i}, 0')
    for i in range(4): a(f'v_mov_b32 v{S1+i}, 0')
    def trreads(ks):
        b = XB + (ks & 1)*16
        off = (ks % 16)*4096
        for jj in range(4):
            a(f'ds_read_b64_tr_b16 {v(b+4*jj,2)}, v{8+jj} offset:{off}')
            a(f'ds_read_b64_tr_b16 {v(b+4*jj+2,2)}, v{8+jj} offset:{off+1024}')
    def sync_for(ks):
        last = min(ks + CH - 1, 27)
        wait_through(('U', last))
        a('s_barrier')
    sync_for(0)
    trreads(0)
    for ks in range(28):
        if ks + PRE <= 28: issue(ks + PRE)
        if ks + 1 < 28:
            if (ks + 1) % CH == 0: sync_for(ks + 1)
            if ks + 1 == 16:
                for jj in range(4): a(f'v_add_u32 v{8+jj}, 0x10000, v{8+jj}')
            trreads(ks + 1)
        rem = 8 if ks + 1 < 28 else 0
        b = XB + (ks & 1)*16
        stats = []
        for dw in range(4):
            t0, t1 = T + 2*(dw & 1), T + 2*(dw & 1) + 1
            stats.append([f'v_lshlrev_b32 v{t0}, 16, v{b+dw}', f'v_and_b32 v{t1}, 0xffff0000, v{b+dw}', f'v_add_f32 v{S1}, v{S1}, v{t0}'])
            stats.append([f'v_add_f32 v{S1+1}, v{S1+1}, v{t1}', f'v_fmac_f32 v{S2}, v{t0}, v{t0}', f'v_fmac_f32 v{S2+1}, v{t1}, v{t1}'])
        for jj in range(4):
            a(f's_waitcnt lgkmcnt({rem + 6 - 2*jj})')
            c0 = '0' if ks == 0 else v(ACC+32*jj, 16)
            c1 = '0' if ks == 0 else v(ACC+32*jj+16, 16)
            a(f'v_mfma_f32_32x32x16_bf16 {v(ACC+32*jj,16)}, {a_(8*ks,4)}, {v(b+4*jj,4)}, {c0}')
            for x in stats[2*jj]: a(x)
            a(f'v_mfma_f32_32x32x16_bf16 {v(ACC+32*jj+16,16)}, {a_(8*ks+4,4)}, {v(b+4*jj,4)}, {c1}')
            for x in stats[2*jj+1]: a(x)
    a(f'v_add_f32 v{S1}, v{S1}, v{S1+1}')
    a(f'v_add_f32 v{S2}, v{S2}, v{S2+1}')
    a(f'v_mov_b32 v{S1+1}, v{S1}')
    a(f'v_mov_b32 v{S2+1}, v{S2}')
    a(f'v_permlane32_swap_b32 v{S1}, v{S1+1}')
    a(f'v_permlane32_swap_b32 v{S2}, v{S2+1}')
    a(f'v_add_f32 v{S1}, v{S1}, v{S1+1}')
    a(f'v_add_f32 v{S2}, v{S2}, v{S2+1}')
    a(f'v_mul_f32 v{S1}, {fhex(1.0/448)}, v{S1}')
    a(f'v_mul_f32 v{S2}, {fhex(1.0/448)}, v{S2}')
    a(f'v_fma_f32 v{S2}, -v{S1}, v{S1}, v{S2}')
    a(f'v_max_f32 v{S2}, 0, v{S2}')
    rb1(a, S2)
    a(f'v_add_f32 v{S2}, {fhex(1e-5)}, v{S2}')
    rb1(a, S2)
    a(f'v_sqrt_f32 v{S2}, v{S2}')
    a(f'v_cvt_pk_bf16_f32 v{T}, -v{S1}, -v{S1}')
    a(f'v_cvt_pk_bf16_f32 v{T+1}, v{S2}, v{S2}')
    a(f'v_and_b32 v{S2}, 0xffff0000, v{T+1}')
    a(f'v_rcp_f32 v{S2}, v{S2}')
    a('v_cmp_lt_u32 vcc, 31, v2')
    a(f'v_mul_f32 v{T+3}, v{S2}, v{S2}')
    a(f'v_cndmask_b32 v{T+2}, v{T}, v{T+1}, vcc')
    a('v_lshlrev_b32 v12, 3, v0')
    a(f'v_add_u32 v12, {STAT}, v12')
    a(f'ds_write_b64 v12, {v(T+2,2)}')
    a('s_waitcnt lgkmcnt(0)')
    a('s_barrier')
    R2 = 72
    for jj in range(4):
        a(f'v_xor_b32 v13, {jj*512}, v12')
        a(f'ds_read_b32 v{EF+4*jj}, v13')
        a(f'ds_read_b32 v{R2+2*jj}, v13 offset:4')
    a('s_lshl_b32 s26, s10, 2')
    for jj in range(4):
        a(f's_xor_b32 s27, s20, {jj}')
        a('s_add_u32 s27, s27, s26')
        a('s_mul_i32 s27, s27, 112')
        a('s_lshl_b32 s28, s22, 1')
        a('s_add_u32 s27, s27, s28')
        a('s_lshl_b32 s27, s27, 10')
        a(f's_add_u32 s{30+jj}, s27, {HID}')
    wait_through(('U', 28))
    for jj in range(4):
        a(f's_waitcnt lgkmcnt({6-2*jj})')
        a(f'v_mfma_f32_32x32x16_bf16 {v(ACC+32*jj,16)}, {a_(8*28,4)}, {v(EF+4*jj,4)}, {v(ACC+32*jj,16)}')
        a(f'v_mfma_f32_32x32x16_bf16 {v(ACC+32*jj+16,16)}, {a_(8*28+4,4)}, {v(EF+4*jj,4)}, {v(ACC+32*jj+16,16)}')
    for jj in range(4):
        g, u = ACC+32*jj, ACC+32*jj+16
        for i in range(16): a(f'v_max_f32 v{g+i}, 0, v{g+i}')
        for i in range(0, 16, 2):
            a(f'v_pk_mul_f32 {v(u+i,2)}, {v(u+i,2)}, {v(R2+2*jj,2)} op_sel_hi:[1,0]')
        for i in range(0, 16, 2):
            a(f'v_pk_mul_f32 {v(g+i,2)}, {v(g+i,2)}, {v(u+i,2)}')
        ob = XB + 8*jj
        for i in range(8):
            a(f'v_cvt_pk_bf16_f32 v{ob+i}, v{g+2*i}, v{g+2*i+1}')
        a(f'buffer_store_dwordx4 {v(ob,4)}, v5, s[16:19], s{30+jj} offen')
        a(f'buffer_store_dwordx4 {v(ob+4,4)}, v5, s[16:19], s{30+jj} offen offset:1024')
    a.label('k3_end')
    a('s_endpgm')
    a.end_kernel(nm, accum=256, denorm=False)
    a.launch(nm, 224, 256, K3_LDS)

K4_LDS = 49152
def k4(a):
    nm = 'k4_kernel'
    RD = P['RD']
    a.begin_kernel(nm)
    a('s_cmp_ge_u32 s2, 224')
    a('s_cbranch_scc1 k4_end')
    a('s_load_dwordx2 s[4:5], s[0:1], 136')
    a('s_load_dwordx2 s[36:37], s[0:1], 120')
    a('s_and_b32 s6, s2, 7')
    a('s_lshr_b32 s7, s2, 3')
    divmod7(a, 7, 8, 9)
    a('s_lshl_b32 s10, s6, 2'); a('s_add_u32 s10, s10, s8')
    a('v_lshrrev_b32 v1, 6, v0')
    a('v_and_b32 v2, 63, v0')
    a('v_readfirstlane_b32 s20, v1')
    a('v_mul_u32_u24 v3, 28672, v1')
    a('v_lshl_add_u32 v3, v2, 4, v3')
    a('s_and_b32 s21, s20, 1')
    a('s_lshr_b32 s22, s20, 1')
    a('s_lshl_b32 s23, s10, 1')
    a('s_lshl_b32 s24, s9, 1')
    a('s_add_u32 s25, s23, s21')
    a('s_add_u32 s26, s24, s22')
    a('s_xor_b32 s27, s25, 1')
    a('s_xor_b32 s28, s26, 1')
    a(f's_mul_i32 s30, s25, {112*1024}'); a(f's_add_u32 s30, s30, {HID}')
    a(f's_mul_i32 s31, s27, {112*1024}'); a(f's_add_u32 s31, s31, {HID}')
    a(f's_mul_i32 s32, s26, {112*1024}'); a(f's_add_u32 s32, s32, {WD}')
    a(f's_mul_i32 s33, s28, {112*1024}'); a(f's_add_u32 s33, s33, {WD}')
    a('s_waitcnt lgkmcnt(0)')
    srd(a, 16, 4, WSZ)
    srd(a, 12, 36, 2048*448*2)
    order = []
    def issue(i):
        if i > 0 and i % 4 == 0:
            for r in (30, 31, 32, 33): a(f's_add_u32 s{r}, s{r}, 4096')
        b = (i % RD)*16
        for n, r in enumerate((32, 30, 31, 33)):
            a(f'buffer_load_dwordx4 {a_(b+4*n,4)}, v3, s[16:19], s{r} offen offset:{(i%4)*1024}')
            order.append((i, n))
    def wait_through(item):
        n = len(order) - 1 - order.index(item)
        assert n <= 63
        a(f's_waitcnt vmcnt({n})')
    for i in range(RD): issue(i)
    a('v_bfe_u32 v4, v0, 5, 1')
    a('v_and_b32 v5, 31, v0')
    a('v_lshlrev_b32 v6, 14, v4')
    a('v_lshl_add_u32 v6, v5, 1, v6')
    a('v_lshlrev_b32 v7, 4, v4')
    a('s_lshl_b32 s34, s25, 5')
    a('v_add_u32 v8, s34, v5')
    a('v_mul_u32_u24 v8, 896, v8')
    a('v_lshl_add_u32 v8, v4, 3, v8')
    a('s_lshl_b32 s34, s26, 6')
    a('v_add_u32 v8, s34, v8')
    a('s_lshl_b32 s34, s26, 17')
    a('s_lshl_b32 s35, s25, 6')
    a('s_add_u32 s34, s34, s35')
    a(f's_add_u32 s34, s34, {X1T}')
    a('s_lshl_b32 s35, s26, 7')
    a(f's_add_u32 s35, s35, {MOD + 5*448*4}')
    a('v_lshlrev_b32 v9, 4, v2')
    for sl in range(1, 4):
        a(f'v_xor_b32 v13, {sl}, v1')
        a('v_mul_u32_u24 v13, 12288, v13')
        a(f'v_add_u32 v{9+sl}, v13, v9')
    a('v_mul_u32_u24 v13, 12288, v1')
    a('v_add_u32 v9, v13, v9')
    ACC = 64
    XR = 16
    GB = 32
    epi = []
    for q in range(4):
        for r in range(4):
            epi.append((f's_add_u32 s38, s34, {(8*q+r)*4096}', f'buffer_load_ushort v{XR+4*q+r}, v6, s[16:19], s38 offen'))
    for q in range(4):
        epi.append((None, f'buffer_load_dwordx4 {v(GB+4*q,4)}, v7, s[16:19], s35 offen offset:{32*q}'))
    for i in range(28):
        b = (i % RD)*16
        W0, H0, H1, W1 = a_(b,4), a_(b+4,4), a_(b+8,4), a_(b+12,4)
        c = lambda n: '0' if i == 0 else v(ACC+16*n, 16)
        wait_through((i, 1))
        a(f'v_mfma_f32_32x32x16_bf16 {v(ACC,16)}, {W0}, {H0}, {c(0)}')
        wait_through((i, 2))
        a(f'v_mfma_f32_32x32x16_bf16 {v(ACC+16,16)}, {W0}, {H1}, {c(1)}')
        wait_through((i, 3))
        a(f'v_mfma_f32_32x32x16_bf16 {v(ACC+32,16)}, {W1}, {H0}, {c(2)}')
        a(f'v_mfma_f32_32x32x16_bf16 {v(ACC+48,16)}, {W1}, {H1}, {c(3)}')
        if i + RD < 28: issue(i + RD)
        elif epi:
            for _ in range(4):
                if epi:
                    x, y = epi.pop(0)
                    if x: a(x)
                    a(y); order.append(('e', len(order)))
    assert not epi
    for sl in range(1, 4):
        for q in range(4):
            a(f'ds_write_b128 v{9+sl}, {v(ACC+16*sl+4*q,4)} offset:{(sl-1)*4096 + q*1024}')
    a('s_waitcnt lgkmcnt(0)')
    a('s_barrier')
    for n in range(12):
        a(f'ds_read_b128 {v(ACC+16+4*n,4)}, v9 offset:{n*1024}')
    a('s_waitcnt vmcnt(0)')
    for i in range(16): a(f'v_lshlrev_b32 v{XR+i}, 16, v{XR+i}')
    for sl in range(3):
        a(f's_waitcnt lgkmcnt({8-4*sl})')
        for i in range(16):
            a(f'v_add_f32 v{ACC+i}, v{ACC+i}, v{ACC+16+16*sl+i}')
    for i in range(0, 16, 2): rb2(a, ACC+i, ACC+i+1, 48 + ((i >> 1) & 3))
    for i in range(16): a(f'v_mul_f32 v{ACC+i}, v{ACC+i}, v{GB+i}')
    for i in range(0, 16, 2): rb2(a, ACC+i, ACC+i+1, 48 + ((i >> 1) & 3))
    for i in range(16): a(f'v_add_f32 v{ACC+i}, v{ACC+i}, v{XR+i}')
    for i in range(8): a(f'v_cvt_pk_bf16_f32 v{52+i}, v{ACC+2*i}, v{ACC+2*i+1}')
    for q in range(4):
        a(f'buffer_store_dwordx2 {v(52+2*q,2)}, v8, s[12:15], 0 offen offset:{16*q}')
    a.label('k4_end')
    a('s_endpgm')
    a.end_kernel(nm, denorm=False)
    a.launch(nm, 224, 256, K4_LDS)

HEADER = open('adaLN_cond__ssm_conv_s4__glu_gated_reglu__prompt.s.ref').read().split('; Override launch')[0]
def build(fn, **kw):
    P.update(kw)
    a = Asm()
    k1(a); k2(a); k3(a); k4(a)
    open(fn, 'w').write(a.text(HEADER))
    print('nops inserted', a.nops)

if __name__ == '__main__':
    out = sys.argv[1] if len(sys.argv) > 1 else 'v1.s'
    kw = {}
    for x in sys.argv[2:]:
        k, val = x.split('=')
        kw[k] = int(val) if val.lstrip('-').isdigit() else val
    build(out, **kw)
```

```python
import sys, math
from asmlib import Asm, v, a_, s, fhex

L, D, NM, F = 2048, 448, 256, 1792
ZX  = 0x0000000
KR  = 0x0380000
X1T = 0x0540000
MOD = 0x0700000
WD  = 0x0710000
WP  = 0x08A0000
HID = 0x0C00000
WSZ = 0x1300000
LOG2E = 1.4426950408889634
P = dict(CH=2, g1map='2x14', RD=12, PRE=20)

def srd(a, sd, sb, nbytes):
    a(f's_mov_b32 s{sd}, s{sb}')
    a(f's_mov_b32 s{sd+1}, s{sb+1}')
    a(f's_mov_b32 s{sd+2}, {hex(nbytes)}')
    a(f's_mov_b32 s{sd+3}, 0x20000')

def cmul(a, d, x, e, t):
    a(f'v_pk_mul_f32 {v(t,2)}, {v(x,2)}, {v(e,2)} op_sel:[0,0] op_sel_hi:[1,0]')
    a(f'v_pk_fma_f32 {v(d,2)}, {v(x,2)}, {v(e,2)}, {v(t,2)} op_sel:[1,1,0] op_sel_hi:[0,1,1] neg_lo:[1,0,0]')

def rb1(a, r):
    a(f'v_cvt_pk_bf16_f32 v{r}, v{r}, v{r}')
    a(f'v_and_b32 v{r}, 0xffff0000, v{r}')

def rb2(a, r0, r1, t):
    a(f'v_cvt_pk_bf16_f32 v{t}, v{r0}, v{r1}')
    a(f'v_lshlrev_b32 v{r0}, 16, v{t}')
    a(f'v_and_b32 v{r1}, 0xffff0000, v{t}')

STAMPS = 0x1400000
class St:
    n = 0
def stamp(a):
    if not P.get('stamp'): return
    a(f's_memrealtime s[{60+2*St.n}:{61+2*St.n}]')
    St.n += 1
    assert St.n <= 14
def stamp_begin(a):
    St.n = 0
    if not P.get('stamp'): return
    a('s_memtime s[96:97]')
    stamp(a)
def stamp_end(a, kidx):
    if P.get('stamp'):
        a('s_waitcnt vmcnt(0) lgkmcnt(0)')
        stamp(a)
        a('s_memtime s[98:99]')
        a('v_lshrrev_b32 v1, 6, v0')
        a('s_lshl_b32 s58, s2, 8')
        a(f's_add_u32 s58, s58, {STAMPS + kidx*1024*256}')
        a('v_lshl_add_u32 v1, v1, 6, s58')
        a('s_waitcnt lgkmcnt(0)')
        a('s_sub_u32 s98, s98, s96')
        for k in range(St.n):
            a(f'v_mov_b32 v2, s{60+2*k}')
            a(f'global_store_dword v1, v2, s[4:5] offset:{4*k}')
        a('v_mov_b32 v2, s98')
        a(f'global_store_dword v1, v2, s[4:5] offset:60')
        a(f'v_mov_b32 v2, {St.n}')
        a(f'global_store_dword v1, v2, s[4:5] offset:56')
    a('s_endpgm')

N_KG, N_LN, N_MOD, N_WD = 448, 128, 84, 56
K1_LDS = 39040
def k1(a):
    nm = 'k1_kernel'
    a.begin_kernel(nm)
    stamp_begin(a)
    tot = N_KG + N_LN + N_MOD + N_WD
    NPF = P.get('npf', 0)
    if NPF:
        a(f's_cmp_ge_u32 s2, {NPF}')
        a('s_cbranch_scc1 k1_main')
        parts = NPF // 8
        a('s_getpc_b64 s[8:9]')
        a.label('k1_pf_pc')
        a('s_sub_u32 s8, s8, k1_pf_pc-k1_kernel')
        a('s_subb_u32 s9, s9, 0')
        a('s_lshr_b32 s3, s2, 3')
        a('s_lshl_b32 s3, s3, 12')
        a('v_lshl_add_u32 v1, v0, 4, s3')
        a('s_mov_b32 s6, code_end-k1_kernel-16')
        nld = P.get('pfn', 8)
        for i in range(nld):
            a(f'v_min_u32 v2, s6, v1')
            a(f'global_load_dwordx4 {v(4+4*i,4)}, v2, s[8:9]')
            a(f'v_add_u32 v1, {4096*parts}, v1')
        a('s_waitcnt vmcnt(0)')
        a('s_endpgm')
        a.label('k1_main'); a.hist = []
        a(f's_sub_u32 s2, s2, {NPF}')
    a(f's_cmp_ge_u32 s2, {tot}')
    a('s_cbranch_scc1 k1_end')
    a('s_load_dwordx2 s[4:5], s[0:1], 136')
    a(f's_cmp_ge_u32 s2, {N_KG + N_LN + N_MOD}')
    a('s_cbranch_scc1 k1_wd')
    a(f's_cmp_ge_u32 s2, {N_KG + N_LN}')
    a('s_cbranch_scc1 k1_mod')
    a(f's_cmp_ge_u32 s2, {N_KG}')
    a('s_cbranch_scc1 k1_ln')
    FT = 34816
    a('s_load_dwordx16 s[8:23], s[0:1], 8')
    a('s_lshl_b32 s3, s2, 9')
    a('v_lshl_add_u32 v1, v0, 1, s3')
    a('s_lshl_b32 s6, s2, 1')
    a('v_mov_b32 v9, s6')
    a('s_waitcnt lgkmcnt(0)')
    for i in range(6):
        a(f'global_load_ushort v{2+i}, v1, s[{8+2*i}:{9+2*i}]')
    a('global_load_ushort v8, v9, s[20:21]')
    a('v_lshlrev_b32 v24, 3, v0')
    for e in range(0, 8, 2):
        a(f'v_sub_u32 v25, {2047-e}, v24')
        a(f'v_sub_u32 v26, {2047-e-1}, v24')
        a('v_cvt_f32_u32 v25, v25')
        a('v_cvt_f32_u32 v26, v26')
        rb2(a, 25, 26, 27)
        a('v_cvt_u32_f32 v25, v25')
        a('v_cvt_u32_f32 v26, v26')
        for (u, dst) in ((25, 10+e), (26, 11+e)):
            a(f'v_and_b32 v28, 0xf00, v{u}')
            a(f'v_and_b32 v29, 7, v{u}')
            a(f'v_lshrrev_b32 v30, 2, v{u}')
            a('v_and_b32 v30, 0x3e, v30')
            a('v_lshl_or_b32 v28, v28, 1, v30')
            a(f'v_lshl_or_b32 v{dst}, v29, 6, v28')
    a('v_lshrrev_b32 v24, 6, v0')
    a('v_mul_u32_u24 v24, 8704, v24')
    a('v_and_b32 v25, 63, v0')
    a('v_lshl_add_u32 v20, v25, 2, v24')
    a('v_and_b32 v26, 31, v0')
    a('v_bfe_u32 v27, v0, 5, 1')
    a('v_mul_u32_u24 v28, 272, v26')
    a('v_lshl_add_u32 v28, v27, 4, v28')
    a('v_add_u32 v21, v28, v24')
    a('v_mul_u32_u24 v28, 144, v26')
    a('v_lshl_add_u32 v28, v27, 4, v28')
    a('v_add_u32 v22, v28, v24')
    a('v_lshrrev_b32 v26, 3, v0')
    a('v_and_b32 v27, 7, v0')
    a('v_mul_u32_u24 v28, 144, v26')
    a('v_lshl_add_u32 v18, v27, 4, v28')
    a('v_lshlrev_b32 v28, 1, v26'); a('v_subrev_u32 v28, 8, v28')
    a('v_lshlrev_b32 v29, 2, v26'); a('v_subrev_u32 v29, 32, v29')
    a('v_lshlrev_b32 v30, 3, v26'); a('v_subrev_u32 v30, 96, v30')
    a('v_max3_i32 v28, v26, v28, v29')
    a('v_max_i32 v28, v28, v30')
    a('v_min_i32 v28, 65, v28')
    a('v_lshlrev_b32 v28, 6, v28')
    a('v_lshl_add_u32 v19, v27, 3, v28')
    a('s_lshl_b32 s3, s2, 12')
    a(f's_add_u32 s3, s3, {KR}')
    a('v_lshl_add_u32 v23, v0, 4, s3')
    stamp(a)
    a('s_waitcnt vmcnt(0)')
    stamp(a)
    for i in range(7):
        a(f'v_lshlrev_b32 v{2+i}, 16, v{2+i}')
    Lhi = LOG2E
    import struct
    Lf = struct.unpack('<f', struct.pack('<f', LOG2E))[0]
    Llo = LOG2E - Lf
    a(f's_mov_b32 s24, {fhex(Lf)}')
    a(f's_mov_b32 s25, {fhex(Llo)}')
    a(f's_mov_b32 s26, {fhex(math.log(2.0))}')
    a('v_mul_f32 v24, s24, v8')
    a('v_fma_f32 v25, v8, s24, -v24')
    a('v_fma_f32 v25, v8, s25, v25')
    a('v_exp_f32 v24, v24')
    a('v_mul_f32 v25, s26, v25')
    a('v_fma_f32 v8, v24, v25, v24')
    rb1(a, 8)
    a('v_mul_f32 v2, v8, v2')
    a('v_mul_f32 v3, v8, v3')
    a('v_mul_f32 v4, v8, v4')
    a('v_mul_f32 v5, v8, v5')
    a('v_mul_f32 v2, s24, v2')
    a('v_mul_f32 v3, 0.15915494309189532, v3')
    def direct(dst, mult, conj):
        if mult == 1:
            a('v_exp_f32 v24, v2'); a('v_fract_f32 v25, v3')
        else:
            a(f'v_mul_f32 v24, {fhex(float(mult))}, v2')
            a(f'v_mul_f32 v25, {fhex(float(mult))}, v3')
            a('v_exp_f32 v24, v24'); a('v_fract_f32 v25, v25')
        a('v_cos_f32 v26, v25')
        a('v_sin_f32 v27, v25')
        a(f'v_mul_f32 v{dst}, v24, v26')
        if conj: a(f'v_mul_f32 v{dst+1}, -v24, v27')
        else: a(f'v_mul_f32 v{dst+1}, v24, v27')
    direct(34, 8, False)
    E1, E256 = 58, 60
    direct(E1, 1, True)
    direct(E256, 256, True)
    a('v_mov_b32 v32, 1.0'); a('v_mov_b32 v33, 0')
    cmul(a, 36, 34, 34, 50)
    cmul(a, 38, 36, 34, 52)
    cmul(a, 48, 36, 36, 54)
    cur, nxt = 32, 40
    for blk in range(8):
        for c in range(4):
            a(f'v_cvt_pk_bf16_f32 v{28+c}, v{cur+2*c}, v{cur+2*c+1}')
        if blk < 7:
            for c in range(4):
                cmul(a, nxt+2*c, cur+2*c, 48, 50+2*c)
        for c in range(4):
            a(f'ds_write_b32 v20, v{28+c} offset:{(blk*4+c)*272}')
        cur, nxt = nxt, cur
    stamp(a)
    for st in range(8):
        a(f'ds_read_b128 {v(64+4*st,4)}, v21 offset:{32*st}')
    X = lambda i: 96 + 0
    xr = {}
    pool = list(range(32, 48, 2)) + [96, 98, 100, 102, 104, 106]
    def newx(i):
        xr[i] = pool.pop(0); return xr[i]
    def freex(i): pool.append(xr.pop(i))
    def wr(i):
        t = 28 + (i & 3)
        a(f'v_cvt_pk_bf16_f32 v{t}, v{xr[i]}, v{xr[i]+1}')
        a(f'ds_write_b32 v20, v{t} offset:{i*272}')
    x0 = newx(0)
    a(f'v_mul_f32 v{x0}, v6, v4')
    a(f'v_mul_f32 v{x0+1}, -v6, v5')
    a(f'v_fma_f32 v{x0}, -v7, v5, v{x0}')
    a(f'v_fma_f32 v{x0+1}, -v7, v4, v{x0+1}')
    E2 = 62
    cmul(a, E2, E1, E1, 50)
    cmul(a, newx(1), xr[0], E1, 52)
    tt = [50, 52, 54, 56]
    k = 0
    for i in range(2, 8):
        cmul(a, newx(i), xr[i-2], E2, tt[k & 3]); k += 1
    for i in range(8): wr(i)
    for i in (1, 3, 5, 7): freex(i)
    for j, src in enumerate((0, 2, 4, 6)):
        cmul(a, newx(8+j), xr[src], E256, tt[j])
    for i in (0, 2, 4, 6): freex(i)
    cmul(a, newx(12), xr[8], E256, 50)
    cmul(a, newx(13), xr[10], E256, 52)
    for i in range(8, 12): wr(i)
    cmul(a, newx(14), xr[12], E256, 54)
    cmul(a, newx(15), xr[13], E256, 56)
    for i in range(8, 12): freex(i)
    wr(12); wr(13)
    cmul(a, newx(16), xr[14], E256, 50)
    wr(14); wr(15)
    for i in range(17, 21):
        cmul(a, newx(i), xr[i-1], E256, tt[i & 3])
        wr(i-1)
    wr(20)
    stamp(a)
    for st in range(8):
        a(f'ds_read_b128 {v(32+4*st,4)}, v21 offset:{32*st}')
    ACC = 96
    for st in range(8):
        a(f's_waitcnt lgkmcnt({7-st})')
        a(f'v_mfma_f32_32x32x16_bf16 {v(ACC,16)}, {v(64+4*st,4)}, {v(32+4*st,4)}, {"0" if st == 0 else v(ACC,16)}')
    for q in range(4):
        a(f'ds_write_b128 v22, {v(ACC+4*q,4)} offset:{32*q}')
    a('s_waitcnt lgkmcnt(0)')
    a('s_barrier')
    stamp(a)
    for w in range(4):
        a(f'ds_read_b128 {v(32+4*w,4)}, v18 offset:{8704*w}')
    a('s_waitcnt lgkmcnt(2)')
    for e in range(4): a(f'v_add_f32 v{32+e}, v{32+e}, v{36+e}')
    a('s_waitcnt lgkmcnt(0)')
    for e in range(4): a(f'v_add_f32 v{40+e}, v{40+e}, v{44+e}')
    for e in range(4): a(f'v_add_f32 v{32+e}, v{32+e}, v{40+e}')
    a('v_cvt_pk_bf16_f32 v36, v32, v33')
    a('v_cvt_pk_bf16_f32 v37, v34, v35')
    a(f'ds_write_b64 v19, v[36:37] offset:{FT}')
    a('s_waitcnt lgkmcnt(0)')
    a('s_barrier')
    stamp(a)
    for e in range(8):
        a(f'ds_read_u16 v{40+e}, v{10+e} offset:{FT}')
    a('s_waitcnt lgkmcnt(0)')
    for e in range(4):
        a(f'v_lshl_or_b32 v{32+e}, v{41+2*e}, 16, v{40+2*e}')
    a('global_store_dwordx4 v23, v[32:35], s[4:5]')
    stamp_end(a, 0)

    a.label('k1_ln'); a.hist = []
    St.n = 1
    a('s_load_dwordx2 s[8:9], s[0:1], 0')
    a(f's_sub_u32 s3, s2, {N_KG}')
    a('s_lshl_b32 s3, s3, 4')
    a('v_lshrrev_b32 v1, 4, v0')
    a('v_and_b32 v2, 15, v0')
    a('v_add_u32 v3, s3, v1')
    a('v_mul_u32_u24 v3, 896, v3')
    a('v_lshl_add_u32 v3, v2, 3, v3')
    a('s_waitcnt lgkmcnt(0)')
    for j in range(7):
        a(f'global_load_dwordx2 {v(10+2*j,2)}, v3, s[8:9] offset:{128*j}')
    a('v_mul_u32_u24 v4, 272, v2')
    a('v_lshl_add_u32 v4, v1, 2, v4')
    a('v_lshrrev_b32 v5, 2, v0')
    a('v_and_b32 v6, 3, v0')
    a('v_add_u32 v7, v1, v6')
    a('v_lshlrev_b32 v7, 4, v7')
    a('v_lshl_add_u32 v7, v5, 6, v7')
    a('s_lshl_b32 s6, s3, 2')
    a('v_lshlrev_b32 v8, 13, v5')
    a('v_lshl_add_u32 v8, v6, 4, v8')
    a('v_add_u32 v8, s6, v8')
    srd(a, 12, 4, WSZ)
    XV = 32
    for j in range(7):
        a(f's_waitcnt vmcnt({6-j})')
        for e2 in range(2):
            a(f'v_lshlrev_b32 v{XV+4*j+2*e2}, 16, v{10+2*j+e2}')
            a(f'v_and_b32 v{XV+4*j+2*e2+1}, 0xffff0000, v{10+2*j+e2}')
    for c in range(4):
        a(f'v_add_f32 v{24+c}, v{XV+c}, v{XV+4+c}')
    for j in range(2, 7):
        for c in range(4):
            a(f'v_add_f32 v{24+c}, v{24+c}, v{XV+4*j+c}')
    a('v_add_f32 v24, v24, v25'); a('v_add_f32 v26, v26, v27'); a('v_add_f32 v24, v24, v26')
    def allred16(r):
        for m in ('quad_perm:[1,0,3,2]', 'quad_perm:[2,3,0,1]', 'row_half_mirror', 'row_mirror'):
            a(f'v_add_f32_dpp v{r}, v{r}, v{r} {m} row_mask:0xf bank_mask:0xf')
    allred16(24)
    a(f'v_mul_f32 v24, {fhex(1.0/448)}, v24')
    for i in range(28):
        a(f'v_sub_f32 v{64+i}, v{XV+i}, v24')
    for c in range(4):
        a(f'v_mul_f32 v{26+c}, v{64+c}, v{64+c}')
    for i in range(4, 28):
        a(f'v_fmac_f32 v{26+(i&3)}, v{64+i}, v{64+i}')
    a('v_add_f32 v26, v26, v27'); a('v_add_f32 v28, v28, v29'); a('v_add_f32 v26, v26, v28')
    allred16(26)
    a(f'v_mul_f32 v26, {fhex(1.0/448)}, v26')
    rb2(a, 24, 26, 27)
    a(f'v_add_f32 v26, {fhex(1e-5)}, v26')
    rb1(a, 26)
    a('v_sqrt_f32 v26, v26')
    rb1(a, 26)
    a('v_rcp_f32 v26, v26')
    for i in range(0, 28, 2):
        a(f'v_sub_f32 v{64+i}, v{XV+i}, v24')
        a(f'v_sub_f32 v{65+i}, v{XV+i+1}, v24')
    for i in range(0, 28, 2):
        rb2(a, 64+i, 65+i, 28 + ((i >> 1) & 3))
    for i in range(28):
        a(f'v_mul_f32 v{64+i}, v{64+i}, v26')
    for i in range(28):
        a(f'v_cvt_pk_bf16_f32 v{64+i}, v{64+i}, v{XV+i}')
        a(f'ds_write_b32 v4, v{64+i} offset:{(i>>2)*4352 + (i&3)*64}')
    a('s_waitcnt lgkmcnt(0)')
    a('s_barrier')
    stamp(a)
    for i in range(7):
        a(f'ds_read_b128 {v(32+4*i,4)}, v7 offset:{4352*i}')
    for i in range(7):
        a(f's_mov_b32 s7, {hex(ZX + 0x80000*i)}')
        a(f's_waitcnt lgkmcnt({6-i})')
        a(f'buffer_store_dwordx4 {v(32+4*i,4)}, v8, s[12:15], s7 offen')
    stamp_end(a, 0)

    a.label('k1_mod'); a.hist = []
    St.n = 1
    a('s_load_dwordx4 s[8:11], s[0:1], 104')
    a(f's_sub_u32 s3, s2, {N_KG + N_LN}')
    a('s_lshl_b32 s6, s3, 6')
    a('v_and_b32 v1, 3, v0')
    a('v_lshrrev_b32 v2, 2, v0')
    a('v_mul_u32_u24 v3, 5376, v2')
    a('v_lshl_add_u32 v3, v1, 4, v3')
    a('v_add_u32 v3, s6, v3')
    a('v_lshlrev_b32 v4, 1, v2')
    a('s_waitcnt lgkmcnt(0)')
    srd(a, 12, 10, 448*2688*2)
    for i in range(7):
        a(f'global_load_ushort v{10+i}, v4, s[8:9] offset:{128*i}')
    for i in range(7):
        a(f's_mov_b32 s7, {344064*i}')
        a(f'buffer_load_dwordx4 {v(32+4*i,4)}, v3, s[12:15], s7 offen')
    a('v_lshrrev_b32 v5, 4, v0')
    a('v_lshlrev_b32 v5, 7, v5')
    a('v_lshl_add_u32 v5, v1, 5, v5')
    a('v_and_b32 v6, 31, v0')
    a('v_lshlrev_b32 v6, 2, v6')
    a('s_waitcnt vmcnt(7)')
    for i in range(7):
        a(f'v_lshlrev_b32 v{10+i}, 16, v{10+i}')
    for i in range(7):
        a(f'v_mul_f32 v{20+i}, {fhex(-LOG2E)}, v{10+i}')
    for i in range(7): a(f'v_exp_f32 v{20+i}, v{20+i}')
    for i in range(7): a(f'v_add_f32 v{20+i}, 1.0, v{20+i}')
    for i in range(7): a(f'v_rcp_f32 v{20+i}, v{20+i}')
    for i in range(7): a(f'v_mul_f32 v{10+i}, v{10+i}, v{20+i}')
    for i in range(7): rb1(a, 10+i)
    ACC = 64
    for i in range(7):
        a(f's_waitcnt vmcnt({6-i})')
        for j in range(4):
            a(f'v_lshlrev_b32 v{20+2*j}, 16, v{32+4*i+j}')
            a(f'v_and_b32 v{21+2*j}, 0xffff0000, v{32+4*i+j}')
        for j in range(8):
            if i == 0: a(f'v_mul_f32 v{ACC+j}, v{20+j}, v{10+i}')
            else: a(f'v_fmac_f32 v{ACC+j}, v{20+j}, v{10+i}')
    for m in ('row_ror:4', 'row_ror:8'):
        for j in range(8):
            a(f'v_add_f32_dpp v{ACC+j}, v{ACC+j}, v{ACC+j} {m} row_mask:0xf bank_mask:0xf')
    a(f'ds_write_b128 v5, {v(ACC,4)}')
    a(f'ds_write_b128 v5, {v(ACC+4,4)} offset:16')
    a('s_waitcnt lgkmcnt(0)')
    a('s_barrier')
    stamp(a)
    a('v_cmp_gt_u32 vcc, 32, v0')
    a('s_and_saveexec_b64 s[16:17], vcc')
    a('s_cbranch_execz k1_end')
    for i in range(16):
        a(f'ds_read_b32 v{32+i}, v6 offset:{128*i}')
    a('s_lshl_b32 s6, s3, 7')
    a(f's_add_u32 s6, s6, {MOD}')
    a('v_add_u32 v7, s6, v6')
    a('s_waitcnt lgkmcnt(0)')
    for st in (8, 4, 2, 1):
        for i in range(st):
            a(f'v_add_f32 v{32+i}, v{32+i}, v{32+st+i}')
    rb1(a, 32)
    a('global_store_dword v7, v32, s[4:5]')
    stamp_end(a, 0)

    a.label('k1_wd'); a.hist = []
    St.n = 1
    a('s_load_dwordx2 s[8:9], s[0:1], 96')
    a(f's_sub_u32 s3, s2, {N_KG + N_LN + N_MOD}')
    a('v_lshrrev_b32 v1, 6, v0')
    a('v_and_b32 v2, 63, v0')
    a('v_readfirstlane_b32 s20, v1')
    a('v_lshlrev_b32 v3, 4, v2')
    a('s_mul_i32 s21, s20, 7168')
    a('s_mul_i32 s6, s3, 28672')
    a('s_add_u32 s6, s6, s21')
    a('s_waitcnt lgkmcnt(0)')
    srd(a, 12, 8, 1792*448*2)
    srd(a, 16, 4, WSZ)
    for i in range(7):
        if i % 4 == 0:
            a(f's_add_u32 m0, s21, {i*1024}')
            a(f's_add_u32 s7, s6, {i*1024}')
        a(f'buffer_load_dwordx4 v3, s[12:15], s7 offen offset:{(i%4)*1024} lds')
    a('v_bfe_u32 v4, v0, 5, 1')
    a('v_bfe_u32 v5, v0, 2, 2')
    a('v_lshl_add_u32 v4, v4, 2, v5')
    a('v_and_b32 v5, 1, v1')
    a('v_lshl_add_u32 v4, v5, 4, v4')
    a('v_mul_u32_u24 v4, 896, v4')
    a('v_bfe_u32 v6, v0, 4, 1')
    a('v_and_b32 v7, 3, v0')
    a('v_lshl_add_u32 v4, v6, 5, v4')
    a('v_lshl_add_u32 v4, v7, 3, v4')
    a('v_lshrrev_b32 v6, 1, v1')
    a('v_mul_u32_u24 v7, 448, v6')
    a('v_add_u32 v4, v4, v7')
    a('v_mul_u32_u24 v7, 784, v6')
    a('v_add_u32 v7, v7, v5')
    a('v_lshl_add_u32 v8, v7, 10, v3')
    a('s_lshl_b32 s22, s3, 11')
    a(f's_add_u32 s22, s22, {WD}')
    a('s_waitcnt vmcnt(0)')
    a('s_barrier')
    stamp(a)
    for i in range(7):
        a(f'ds_read_b64_tr_b16 {v(32+4*i,2)}, v4 offset:{64*i}')
        a(f'ds_read_b64_tr_b16 {v(34+4*i,2)}, v4 offset:{64*i+7168}')
    for i in range(7):
        a(f's_add_u32 s7, s22, {i*112*1024}')
        a(f's_waitcnt lgkmcnt({12-2*i})')
        a(f'buffer_store_dwordx4 {v(32+4*i,4)}, v8, s[16:19], s7 offen')
    stamp_end(a, 0)
    a.label('k1_end')
    a('s_endpgm')
    a.end_kernel(nm, denorm=False)
    a.launch(nm, tot + NPF, 256, K1_LDS)

N_CV, N_PP = 448, 112
UB = 33280
K2_LDS = UB + 96*80
def k2(a):
    nm = 'k2_kernel'
    a.begin_kernel(nm)
    stamp_begin(a)
    tot = N_CV + N_PP
    a(f's_cmp_ge_u32 s2, {tot}')
    a('s_cbranch_scc1 k2_end')
    a('s_load_dwordx2 s[4:5], s[0:1], 136')
    a(f's_cmp_ge_u32 s2, {N_CV}')
    a('s_cbranch_scc1 k2_prep')
    a('s_load_dwordx2 s[8:9], s[0:1], 64')
    a('s_lshl_b32 s3, s2, 13')
    a('v_lshl_add_u32 v1, v0, 5, s3')
    a('v_lshlrev_b32 v2, 4, v0')
    a('s_lshl_b32 s6, s2, 12')
    a('s_lshl_b32 s7, s2, 2')
    a(f's_add_u32 s7, s7, {MOD}')
    a('s_waitcnt lgkmcnt(0)')
    a('global_load_dwordx4 v[8:11], v1, s[4:5]')
    a('global_load_dwordx4 v[12:15], v1, s[4:5] offset:16')
    a(f's_add_u32 s10, s6, {KR}')
    a('s_add_u32 s12, s4, s10')
    a('s_addc_u32 s13, s5, 0')
    a('s_mov_b32 s14, 4096')
    a('s_mov_b32 s15, 0x20000')
    a('buffer_load_dwordx4 v[16:19], v2, s[12:15], 0 offen')
    a('buffer_load_dwordx4 v[20:23], v2, s[12:15], 0 offen offset:16')
    a('s_add_u32 s16, s4, s7')
    a('s_addc_u32 s17, s5, 0')
    a('s_load_dword s20, s[16:17], 0')
    a(f's_load_dword s21, s[16:17], {448*4}')
    a(f's_load_dword s22, s[16:17], {2*448*4}')
    a('s_lshl_b32 s10, s2, 1')
    a('s_and_b32 s11, s10, 0xfffffffc')
    a('s_add_u32 s8, s8, s11')
    a('s_addc_u32 s9, s9, 0')
    a('s_load_dword s23, s[8:9], 0')
    for i in range(4): a(f'v_mov_b32 v{24+i}, 0')
    a('v_cmp_gt_u32 vcc, 160, v0')
    a('s_and_saveexec_b64 s[18:19], vcc')
    a(f'ds_write_b128 v2, v[24:27] offset:{UB}')
    a('s_mov_b64 exec, s[18:19]')
    a('v_and_b32 v3, 7, v0')
    a('v_mul_u32_u24 v3, 4160, v3')
    a('v_lshrrev_b32 v4, 3, v0')
    a('v_lshl_add_u32 v3, v4, 4, v3')
    a('v_cmp_gt_u32 vcc, 24, v0')
    a('s_and_saveexec_b64 s[18:19], vcc')
    a('ds_write_b128 v3, v[24:27] offset:4096')
    a('s_mov_b64 exec, s[18:19]')
    a('v_lshrrev_b32 v3, 2, v0')
    a('v_mul_u32_u24 v3, 80, v3')
    a('v_and_b32 v4, 3, v0')
    a('v_lshl_add_u32 v3, v4, 4, v3')
    a('v_lshrrev_b32 v28, 6, v0')
    a('v_and_b32 v29, 7, v0')
    a('v_bfe_u32 v30, v0, 3, 2')
    a('v_bfe_u32 v31, v0, 5, 1')
    a('v_mul_u32_u24 v4, 4160, v29')
    a('v_sub_u32 v5, v31, v30')
    a('v_lshl_add_u32 v4, v5, 4, v4')
    a('v_lshlrev_b32 v5, 9, v28')
    a('v_sub_u32 v4, v4, v5')
    a(f'v_add_u32 v4, {4080 - 32*78}, v4')
    a('v_and_b32 v29, 31, v0')
    a('v_lshlrev_b32 v5, 3, v28')
    a('v_sub_u32 v5, v29, v5')
    a('v_add_u32 v5, 25, v5')
    a('v_mul_u32_u24 v5, 80, v5')
    a('v_lshl_add_u32 v5, v31, 4, v5')
    a('v_bfe_u32 v30, v0, 1, 2')
    a('v_and_b32 v6, 1, v0')
    a('v_lshl_or_b32 v30, v6, 2, v30')
    a('v_xor_b32 v30, v30, v31')
    a('v_lshlrev_b32 v6, 13, v28')
    a('v_lshl_add_u32 v6, v29, 7, v6')
    PW = 96
    for q in range(4):
        a(f'v_xor_b32 v7, {2*q}, v30')
        a(f'v_lshl_add_u32 v{PW+q}, v7, 4, v6')
    a('v_bfe_u32 v30, v0, 3, 2')
    a('v_bfe_u32 v6, v0, 2, 1')
    a('v_lshl_or_b32 v30, v6, 2, v30')
    a('v_and_b32 v6, 3, v0')
    a('v_lshlrev_b32 v6, 1, v6')
    a('v_xor_b32 v30, v30, v6')
    a('v_lshrrev_b32 v6, 2, v0')
    a('v_lshlrev_b32 v6, 7, v6')
    a('v_lshl_add_u32 v100, v30, 4, v6')
    a('v_xor_b32 v30, 1, v30')
    a('v_lshl_add_u32 v101, v30, 4, v6')
    a(f's_add_u32 s6, s6, {X1T}')
    a('v_add_u32 v102, s6, v2')
    a('s_waitcnt lgkmcnt(0)')
    a('v_add_f32 v6, 1.0, s21') if False else a('v_mov_b32 v6, s21')
    a('v_add_f32 v6, 1.0, v6')
    rb1(a, 6)
    a('s_bitcmp1_b32 s2, 0')
    a('s_lshl_b32 s24, s23, 16')
    a('s_and_b32 s25, s23, 0xffff0000')
    a('s_bitcmp1_b32 s2, 0')
    a('s_cselect_b32 s23, s25, s24')
    stamp(a)
    a('s_waitcnt vmcnt(2)')
    stamp(a)
    H = 104
    for e in range(8):
        a(f'v_lshlrev_b32 v{32+e}, 16, v{8+e}')
    for e in range(8):
        a(f'v_mul_f32 v{32+e}, v{32+e}, v6')
    for e in range(0, 8, 2):
        rb2(a, 32+e, 33+e, 40 + (e >> 1))
    for e in range(8):
        a(f'v_add_f32 v{32+e}, s20, v{32+e}')
    for e in range(4):
        a(f'v_cvt_pk_bf16_f32 v{H+e}, v{32+2*e}, v{33+2*e}')
    a(f'ds_write_b128 v3, {v(H,4)} offset:{UB+2560}')
    a('s_waitcnt vmcnt(0)')
    G = 16; G1 = 32; O = 40; O1 = 48
    a(f'ds_write_b128 v2, {v(G,4)} offset:{7*4160}')
    a(f'ds_write_b128 v2, {v(G+2,4)} offset:{3*4160}')
    for k in range(6): a(f'v_mov_b32 v{G1+k}, v{G+1+k}')
    a(f'ds_write_b128 v2, {v(G1,4)} offset:{5*4160}')
    a(f'ds_write_b128 v2, {v(G1+2,4)} offset:{1*4160}')
    for k in range(6): a(f'v_alignbit_b32 v{O+k}, v{G+k+1}, v{G+k}, 16')
    a(f'ds_write_b128 v2, {v(O,4)} offset:{6*4160}')
    a(f'ds_write_b128 v2, {v(O+2,4)} offset:{2*4160}')
    for k in range(6): a(f'v_alignbit_b32 v{O1+k}, v{G+k+2}, v{G+k+1}, 16')
    a(f'ds_write_b128 v2, {v(O1,4)} offset:{4*4160}')
    a(f'ds_write_b128 v2, {v(O1+2,4)} offset:{0*4160}')
    a('s_waitcnt lgkmcnt(0)')
    a('s_barrier')
    stamp(a)
    A0, A1 = 64, 80
    FB = 16
    trip = [(dl, kk) for dl in range(8) for kk in range(2)]
    def loads(n):
        dl, kk = trip[n]
        qp = 2*dl - kk
        b = FB + (n % 3)*16
        oa = 32*(14 - qp)
        ob = UB + (7 - dl)*80 + 32*kk
        a(f'ds_read_b128 {v(b,4)}, v4 offset:{oa+2048}')
        a(f'ds_read_b128 {v(b+4,4)}, v5 offset:{ob}')
        a(f'ds_read_b128 {v(b+8,4)}, v5 offset:{ob+2560}')
        a(f'ds_read_b128 {v(b+12,4)}, v4 offset:{oa}')
    loads(0); loads(1)
    for n in range(16):
        if n + 2 < 16: loads(n + 2)
        rem = min(2, 15 - n) * 4
        b = FB + (n % 3)*16
        a(f's_waitcnt lgkmcnt({rem+2})')
        a(f'v_mfma_f32_32x32x16_bf16 {v(A0,16)}, {v(b,4)}, {v(b+4,4)}, {"0" if n == 0 else v(A0,16)}')
        a(f's_waitcnt lgkmcnt({rem+1})')
        a(f'v_mfma_f32_32x32x16_bf16 {v(A1,16)}, {v(b,4)}, {v(b+8,4)}, {"0" if n == 0 else v(A1,16)}')
        a(f's_waitcnt lgkmcnt({rem})')
        a(f'v_mfma_f32_32x32x16_bf16 {v(A1,16)}, {v(b+12,4)}, {v(b+4,4)}, {v(A1,16)}')
    a('s_barrier')
    stamp(a)
    for c, A in enumerate((A0, A1)):
        for q in range(4):
            a(f'ds_write_b128 v{PW+q}, {v(A+4*q,4)} offset:{4096*c}')
    a('s_waitcnt lgkmcnt(0)')
    a('s_barrier')
    stamp(a)
    for w in range(4):
        a(f'ds_read_b128 {v(16+8*w,4)}, v100 offset:{8192*w}')
        a(f'ds_read_b128 {v(20+8*w,4)}, v101 offset:{8192*w}')
    for e in range(4):
        a(f'v_lshlrev_b32 v{48+2*e}, 16, v{H+e}')
        a(f'v_and_b32 v{49+2*e}, 0xffff0000, v{H+e}')
    for e in range(8): a(f'v_mul_f32 v{48+e}, s23, v{48+e}')
    for e in range(0, 8, 2): rb2(a, 48+e, 49+e, 56 + (e >> 1))
    for e in range(8): a(f'v_and_b32 v{8+e}, 0xffff0000, v{8+e}')
    a('s_waitcnt lgkmcnt(4)')
    for e in range(8): a(f'v_add_f32 v{16+e}, v{16+e}, v{24+e}')
    a('s_waitcnt lgkmcnt(0)')
    for e in range(8): a(f'v_add_f32 v{32+e}, v{32+e}, v{40+e}')
    for e in range(8): a(f'v_add_f32 v{16+e}, v{16+e}, v{32+e}')
    for e in range(0, 8, 2): rb2(a, 16+e, 17+e, 56 + (e >> 1))
    for e in range(8): a(f'v_add_f32 v{16+e}, v{16+e}, v{48+e}')
    for e in range(0, 8, 2): rb2(a, 16+e, 17+e, 56 + (e >> 1))
    for e in range(8): a(f'v_mul_f32 v{16+e}, s22, v{16+e}')
    for e in range(0, 8, 2): rb2(a, 16+e, 17+e, 56 + (e >> 1))
    for e in range(8): a(f'v_add_f32 v{16+e}, v{16+e}, v{8+e}')
    for e in range(4): a(f'v_cvt_pk_bf16_f32 v{24+e}, v{16+2*e}, v{17+2*e}')
    a('global_store_dwordx4 v102, v[24:27], s[4:5]')
    stamp_end(a, 1)

    a.label('k2_prep'); a.hist = []
    St.n = 1
    SC = 28672
    a('s_load_dwordx4 s[8:11], s[0:1], 80')
    a(f's_sub_u32 s3, s2, {N_CV}')
    a('s_lshr_b32 s6, s3, 1')
    a('s_lshl_b32 s6, s6, 6')
    a('v_and_b32 v1, 3, v0')
    a('v_lshrrev_b32 v2, 2, v0')
    a('v_mul_u32_u24 v3, 3584, v2')
    a('v_lshl_add_u32 v3, v1, 4, v3')
    a('v_add_u32 v3, s6, v3')
    a('v_lshlrev_b32 v4, 2, v2')
    a('s_waitcnt lgkmcnt(0)')
    a('s_bitcmp1_b32 s3, 0')
    a('s_cselect_b32 s12, s10, s8')
    a('s_cselect_b32 s13, s11, s9')
    a(f's_mov_b32 s14, {448*1792*2}')
    a('s_mov_b32 s15, 0x20000')
    srd(a, 16, 4, WSZ)
    a(f's_mov_b32 s20, {MOD + 3*448*4}')
    a(f's_mov_b32 s21, {MOD + 4*448*4}')
    for i in range(7):
        a(f'buffer_load_dword v{10+i}, v4, s[16:19], s21 offen offset:{256*i}')
    for i in range(7):
        a(f'buffer_load_dword v{17+i}, v4, s[16:19], s20 offen offset:{256*i}')
    for i in range(7):
        a(f's_mov_b32 s7, {229376*i}')
        a(f'buffer_load_dwordx4 {v(32+4*i,4)}, v3, s[12:15], s7 offen')
    a('v_lshlrev_b32 v5, 4, v0')
    a('v_lshrrev_b32 v6, 4, v0')
    a('v_lshlrev_b32 v6, 8, v6')
    a('v_lshl_add_u32 v6, v1, 5, v6')
    a('v_lshrrev_b32 v24, 6, v0')
    a('v_bfe_u32 v7, v0, 5, 1')
    a('v_bfe_u32 v8, v0, 2, 2')
    a('v_lshl_add_u32 v7, v7, 3, v8')
    a('v_lshlrev_b32 v7, 6, v7')
    a('v_bfe_u32 v8, v0, 4, 1')
    a('v_lshl_add_u32 v7, v8, 5, v7')
    a('v_lshl_add_u32 v7, v1, 3, v7')
    a('v_mul_u32_u24 v8, 7168, v24')
    a('v_add_u32 v7, v7, v8')
    a('v_and_b32 v25, 63, v0')
    a('v_lshl_add_u32 v8, v25, 4, v8')
    a('v_lshlrev_b32 v9, 2, v25')
    a('v_readfirstlane_b32 s24, v24')
    a('s_mul_i32 s22, s3, 29696')
    a(f's_add_u32 s22, s22, {WP}')
    a('s_waitcnt vmcnt(14)')
    for i in range(7): a(f'v_add_f32 v{10+i}, 1.0, v{10+i}')
    for i in range(7): rb1(a, 10+i)
    S, B = 64, 72
    for i in range(7):
        a(f's_waitcnt vmcnt({6-i})')
        for j in range(4):
            a(f'v_lshlrev_b32 v{80+2*j}, 16, v{32+4*i+j}')
            a(f'v_and_b32 v{81+2*j}, 0xffff0000, v{32+4*i+j}')
        for j in range(8):
            if i == 0: a(f'v_mul_f32 v{B+j}, v{80+j}, v{17+i}')
            else: a(f'v_fmac_f32 v{B+j}, v{80+j}, v{17+i}')
        for j in range(8):
            a(f'v_mul_f32 v{80+j}, v{80+j}, v{10+i}')
        for j in range(4):
            a(f'v_cvt_pk_bf16_f32 v{32+4*i+j}, v{80+2*j}, v{81+2*j}')
        a(f'ds_write_b128 v5, {v(32+4*i,4)} offset:{4096*i}')
        for j in range(8):
            if i == 0: a(f'v_mov_b32 v{S+j}, v{80+j}')
            else: a(f'v_add_f32 v{S+j}, v{S+j}, v{80+j}')
    for m in ('row_ror:4', 'row_ror:8'):
        for j in range(16):
            a(f'v_add_f32_dpp v{S+j}, v{S+j}, v{S+j} {m} row_mask:0xf bank_mask:0xf')
    a(f'ds_write_b128 v6, {v(S,4)} offset:{SC}')
    a(f'ds_write_b128 v6, {v(S+4,4)} offset:{SC+16}')
    a(f'ds_write_b128 v6, {v(B,4)} offset:{SC+128}')
    a(f'ds_write_b128 v6, {v(B+4,4)} offset:{SC+144}')
    a('s_waitcnt lgkmcnt(0)')
    a('s_barrier')
    stamp(a)
    for i in range(7):
        a(f'ds_read_b64_tr_b16 {v(32+4*i,2)}, v7 offset:{1024*i}')
        a(f'ds_read_b64_tr_b16 {v(34+4*i,2)}, v7 offset:{1024*i+256}')
    for i in range(7):
        a(f's_add_u32 s7, s22, {i*1024}')
        a(f's_waitcnt lgkmcnt({12-2*i})')
        a(f'buffer_store_dwordx4 {v(32+4*i,4)}, v8, s[16:19], s7 offen')
    a('s_cmp_lg_u32 s24, 0')
    a('s_cbranch_scc1 k2_end')
    for i in range(16):
        a(f'ds_read_b32 v{80+i}, v9 offset:{SC+256*i}')
    a('v_mov_b32 v65, 0'); a('v_mov_b32 v66, 0'); a('v_mov_b32 v67, 0')
    a(f's_add_u32 s7, s22, {28*1024}')
    a('s_waitcnt lgkmcnt(0)')
    for st in (8, 4, 2, 1):
        for i in range(st):
            a(f'v_add_f32 v{80+i}, v{80+i}, v{80+st+i}')
    a('v_mov_b32 v81, v80')
    rb1(a, 81)
    a('v_sub_f32 v82, v80, v81')
    a('v_cvt_pk_bf16_f32 v64, v81, v82')
    a('buffer_store_dwordx4 v[64:67], v8, s[16:19], s7 offen')
    stamp_end(a, 1)
    a.label('k2_end')
    a('s_endpgm')
    a.end_kernel(nm, denorm=False)
    a.launch(nm, tot, 256, K2_LDS)

STAT = 114688
K3_LDS = STAT + 2048
def divmod7(a, sj, sq, sr):
    a(f's_mul_i32 s{sq}, s{sj}, 37')
    a(f's_lshr_b32 s{sq}, s{sq}, 8')
    a(f's_mul_i32 s{sr}, s{sq}, 7')
    a(f's_sub_u32 s{sr}, s{sj}, s{sr}')

def k3(a):
    nm = 'k3_kernel'
    CH, PRE = P['CH'], P['PRE']
    a.begin_kernel(nm)
    stamp_begin(a)
    a('s_cmp_ge_u32 s2, 224')
    a('s_cbranch_scc1 k3_end')
    a('s_load_dwordx2 s[4:5], s[0:1], 136')
    a('s_and_b32 s6, s2, 7')
    a('s_lshr_b32 s7, s2, 3')
    divmod7(a, 7, 8, 9)
    if P['g1map'] == '2x14':
        a('s_lshr_b32 s12, s8, 1'); a('s_lshl_b32 s10, s6, 1'); a('s_add_u32 s10, s10, s12')
        a('s_and_b32 s11, s8, 1'); a('s_mul_i32 s11, s11, 7'); a('s_add_u32 s11, s11, s9')
    else:
        a('s_lshr_b32 s10, s6, 1'); a('s_lshl_b32 s10, s10, 2'); a('s_add_u32 s10, s10, s8')
        a('s_and_b32 s11, s6, 1'); a('s_mul_i32 s11, s11, 7'); a('s_add_u32 s11, s11, s9')
    a('v_lshrrev_b32 v1, 6, v0')
    a('v_and_b32 v2, 63, v0')
    a('v_readfirstlane_b32 s20, v1')
    a('v_lshrrev_b32 v3, 4, v2')
    a('v_and_b32 v4, 15, v0')
    a('v_lshlrev_b32 v5, 2, v3')
    a('v_xor_b32 v4, v4, v5')
    a('v_lshlrev_b32 v4, 4, v4')
    a('v_lshl_add_u32 v4, v3, 12, v4')
    a('v_lshl_add_u32 v4, v1, 14, v4')
    a('v_lshlrev_b32 v5, 4, v2')
    a('s_lshl_b32 s21, s10, 8')
    a(f's_add_u32 s21, s21, {X1T}')
    a('s_lshl_b32 s22, s11, 2')
    a('s_add_u32 s22, s22, s20')
    a(f's_mul_i32 s23, s22, {2*29*1024}')
    a(f's_add_u32 s23, s23, {WP}')
    a(f's_add_u32 s24, s23, {29*1024}')
    a('s_lshl_b32 s25, s20, 10')
    a('s_waitcnt lgkmcnt(0)')
    srd(a, 16, 4, WSZ)
    nissued = [0]
    order = []
    def issue(ks):
        if ks < 28:
            a(f's_add_u32 m0, s25, {ks*4096}')
            a(f's_add_u32 s26, s21, {ks*65536}')
            a('buffer_load_dwordx4 v4, s[16:19], s26 offen lds')
            order.append(('D', ks))
        if ks % 4 == 0:
            a(f's_add_u32 s27, s23, {ks*1024}')
            a(f's_add_u32 s28, s24, {ks*1024}')
        a(f'buffer_load_dwordx4 {a_(8*ks,4)}, v5, s[16:19], s27 offen offset:{(ks%4)*1024}')
        order.append(('G', ks))
        a(f'buffer_load_dwordx4 {a_(8*ks+4,4)}, v5, s[16:19], s28 offen offset:{(ks%4)*1024}')
        order.append(('U', ks))
    def wait_through(item):
        idx = order.index(item)
        n = len(order) - 1 - idx
        assert n <= 63
        a(f's_waitcnt vmcnt({n})')
    for ks in range(PRE): issue(ks)
    a('v_bfe_u32 v6, v0, 5, 1')
    a('v_bfe_u32 v7, v0, 2, 2')
    a('v_lshl_add_u32 v12, v6, 3, v7')
    a('v_lshlrev_b32 v12, 8, v12')
    a('v_bfe_u32 v13, v0, 4, 1')
    a('v_lshl_add_u32 v12, v13, 5, v12')
    a('v_and_b32 v13, 3, v0')
    a('v_lshl_add_u32 v12, v13, 3, v12')
    a('v_xor_b32 v7, v7, v1')
    for jj in range(4):
        a(f'v_xor_b32 v13, {jj}, v7')
        a(f'v_lshl_add_u32 v{8+jj}, v13, 6, v12')
    if P.get('x_trlin'):
        for jj in range(4): a(f'v_lshlrev_b32 v{8+jj}, 3, v2')
    XB = 16
    EF = 48
    ACC = 128
    S1, S2 = 64, 66
    T = 68
    for i in range(16): a(f'v_mov_b32 v{EF+i}, 0')
    for i in range(4): a(f'v_mov_b32 v{S1+i}, 0')
    def trreads(ks):
        b = XB + (ks & 1)*16
        off = (ks % 16)*4096
        for jj in range(4):
            a(f'ds_read_b64_tr_b16 {v(b+4*jj,2)}, v{8+jj} offset:{off}')
            a(f'ds_read_b64_tr_b16 {v(b+4*jj+2,2)}, v{8+jj} offset:{off+1024}')
    def sync_for(ks):
        last = min(ks + CH - 1, 27)
        wait_through(('U', last))
        if not (P.get('x_nobar') and ks > 8): a('s_barrier')
    stamp(a)
    sync_for(0)
    stamp(a)
    trreads(0)
    for ks in range(28):
        if ks in (4, 8, 12, 16, 20, 24): stamp(a)
        if ks + PRE <= 28: issue(ks + PRE)
        if ks + 1 < 28:
            if (ks + 1) % CH == 0: sync_for(ks + 1)
            if ks + 1 == 16:
                for jj in range(4): a(f'v_add_u32 v{8+jj}, 0x10000, v{8+jj}')
            trreads(ks + 1)
        rem = 8 if ks + 1 < 28 else 0
        b = XB + (ks & 1)*16
        stats = []
        for dw in range(4):
            t0, t1 = T + 2*(dw & 1), T + 2*(dw & 1) + 1
            stats.append([f'v_lshlrev_b32 v{t0}, 16, v{b+dw}', f'v_and_b32 v{t1}, 0xffff0000, v{b+dw}', f'v_add_f32 v{S1}, v{S1}, v{t0}'])
            stats.append([f'v_add_f32 v{S1+1}, v{S1+1}, v{t1}', f'v_fmac_f32 v{S2}, v{t0}, v{t0}', f'v_fmac_f32 v{S2+1}, v{t1}, v{t1}'])
        for jj in range(4):
            a(f's_waitcnt lgkmcnt({rem + 6 - 2*jj})')
            c0 = '0' if ks == 0 else v(ACC+32*jj, 16)
            c1 = '0' if ks == 0 else v(ACC+32*jj+16, 16)
            a(f'v_mfma_f32_32x32x16_bf16 {v(ACC+32*jj,16)}, {a_(8*ks,4)}, {v(b+4*jj,4)}, {c0}')
            for x in stats[2*jj]:
                if not P.get('x_nostat'): a(x)
            a(f'v_mfma_f32_32x32x16_bf16 {v(ACC+32*jj+16,16)}, {a_(8*ks+4,4)}, {v(b+4*jj,4)}, {c1}')
            for x in stats[2*jj+1]:
                if not P.get('x_nostat'): a(x)
    stamp(a)
    a(f'v_add_f32 v{S1}, v{S1}, v{S1+1}')
    a(f'v_add_f32 v{S2}, v{S2}, v{S2+1}')
    a(f'v_mov_b32 v{S1+1}, v{S1}')
    a(f'v_mov_b32 v{S2+1}, v{S2}')
    a(f'v_permlane32_swap_b32 v{S1}, v{S1+1}')
    a(f'v_permlane32_swap_b32 v{S2}, v{S2+1}')
    a(f'v_add_f32 v{S1}, v{S1}, v{S1+1}')
    a(f'v_add_f32 v{S2}, v{S2}, v{S2+1}')
    a(f'v_mul_f32 v{S1}, {fhex(1.0/448)}, v{S1}')
    a(f'v_mul_f32 v{S2}, {fhex(1.0/448)}, v{S2}')
    a(f'v_fma_f32 v{S2}, -v{S1}, v{S1}, v{S2}')
    a(f'v_max_f32 v{S2}, 0, v{S2}')
    rb1(a, S2)
    a(f'v_add_f32 v{S2}, {fhex(1e-5)}, v{S2}')
    rb1(a, S2)
    a(f'v_sqrt_f32 v{S2}, v{S2}')
    a(f'v_cvt_pk_bf16_f32 v{T}, -v{S1}, -v{S1}')
    a(f'v_cvt_pk_bf16_f32 v{T+1}, v{S2}, v{S2}')
    a(f'v_and_b32 v{S2}, 0xffff0000, v{T+1}')
    a(f'v_rcp_f32 v{S2}, v{S2}')
    a('v_cmp_lt_u32 vcc, 31, v2')
    a(f'v_mul_f32 v{T+3}, v{S2}, v{S2}')
    a(f'v_cndmask_b32 v{T+2}, v{T}, v{T+1}, vcc')
    a('v_lshlrev_b32 v12, 3, v0')
    a(f'v_add_u32 v12, {STAT}, v12')
    a(f'ds_write_b64 v12, {v(T+2,2)}')
    a('s_waitcnt lgkmcnt(0)')
    a('s_barrier')
    stamp(a)
    R2 = 72
    for jj in range(4):
        a(f'v_xor_b32 v13, {jj*512}, v12')
        a(f'ds_read_b32 v{EF+4*jj}, v13')
        a(f'ds_read_b32 v{R2+2*jj}, v13 offset:4')
    a('s_lshl_b32 s26, s10, 2')
    for jj in range(4):
        a(f's_xor_b32 s27, s20, {jj}')
        a('s_add_u32 s27, s27, s26')
        a('s_mul_i32 s27, s27, 112')
        a('s_lshl_b32 s28, s22, 1')
        a('s_add_u32 s27, s27, s28')
        a('s_lshl_b32 s27, s27, 10')
        a(f's_add_u32 s{30+jj}, s27, {HID}')
    wait_through(('U', 28))
    for jj in range(4):
        a(f's_waitcnt lgkmcnt({6-2*jj})')
        a(f'v_mfma_f32_32x32x16_bf16 {v(ACC+32*jj,16)}, {a_(8*28,4)}, {v(EF+4*jj,4)}, {v(ACC+32*jj,16)}')
        a(f'v_mfma_f32_32x32x16_bf16 {v(ACC+32*jj+16,16)}, {a_(8*28+4,4)}, {v(EF+4*jj,4)}, {v(ACC+32*jj+16,16)}')
    stamp(a)
    for jj in range(4):
        g, u = ACC+32*jj, ACC+32*jj+16
        for i in range(16): a(f'v_max_f32 v{g+i}, 0, v{g+i}')
        for i in range(0, 16, 2):
            a(f'v_pk_mul_f32 {v(u+i,2)}, {v(u+i,2)}, {v(R2+2*jj,2)} op_sel_hi:[1,0]')
        for i in range(0, 16, 2):
            a(f'v_pk_mul_f32 {v(g+i,2)}, {v(g+i,2)}, {v(u+i,2)}')
        ob = XB + 8*jj
        for i in range(8):
            a(f'v_cvt_pk_bf16_f32 v{ob+i}, v{g+2*i}, v{g+2*i+1}')
        a(f'buffer_store_dwordx4 {v(ob,4)}, v5, s[16:19], s{30+jj} offen')
        a(f'buffer_store_dwordx4 {v(ob+4,4)}, v5, s[16:19], s{30+jj} offen offset:1024')
    stamp_end(a, 2)
    a.label('k3_end')
    a('s_endpgm')
    a.end_kernel(nm, accum=256, denorm=False)
    a.launch(nm, 224, 256, K3_LDS)

K4_LDS = 49152
def k4(a):
    nm = 'k4_kernel'
    RD = P['RD']
    a.begin_kernel(nm)
    stamp_begin(a)
    a('s_cmp_ge_u32 s2, 224')
    a('s_cbranch_scc1 k4_end')
    a('s_load_dwordx2 s[4:5], s[0:1], 136')
    a('s_load_dwordx2 s[36:37], s[0:1], 120')
    a('s_and_b32 s6, s2, 7')
    a('s_lshr_b32 s7, s2, 3')
    divmod7(a, 7, 8, 9)
    a('s_lshl_b32 s10, s6, 2'); a('s_add_u32 s10, s10, s8')
    a('v_lshrrev_b32 v1, 6, v0')
    a('v_and_b32 v2, 63, v0')
    a('v_readfirstlane_b32 s20, v1')
    a('v_mul_u32_u24 v3, 28672, v1')
    a('v_lshl_add_u32 v3, v2, 4, v3')
    a('s_and_b32 s21, s20, 1')
    a('s_lshr_b32 s22, s20, 1')
    a('s_lshl_b32 s23, s10, 1')
    a('s_lshl_b32 s24, s9, 1')
    a('s_add_u32 s25, s23, s21')
    a('s_add_u32 s26, s24, s22')
    a('s_xor_b32 s27, s25, 1')
    a('s_xor_b32 s28, s26, 1')
    a(f's_mul_i32 s30, s25, {112*1024}'); a(f's_add_u32 s30, s30, {HID}')
    a(f's_mul_i32 s31, s27, {112*1024}'); a(f's_add_u32 s31, s31, {HID}')
    a(f's_mul_i32 s32, s26, {112*1024}'); a(f's_add_u32 s32, s32, {WD}')
    a(f's_mul_i32 s33, s28, {112*1024}'); a(f's_add_u32 s33, s33, {WD}')
    a('s_waitcnt lgkmcnt(0)')
    srd(a, 16, 4, WSZ)
    srd(a, 12, 36, 2048*448*2)
    order = []
    def issue(i):
        if i > 0 and i % 4 == 0:
            for r in (30, 31, 32, 33): a(f's_add_u32 s{r}, s{r}, 4096')
        b = (i % RD)*16
        for n, r in enumerate((32, 30, 31, 33)):
            a(f'buffer_load_dwordx4 {a_(b+4*n,4)}, v3, s[16:19], s{r} offen offset:{(i%4)*1024}')
            order.append((i, n))
    def wait_through(item):
        n = len(order) - 1 - order.index(item)
        assert n <= 63
        a(f's_waitcnt vmcnt({n})')
    for i in range(RD): issue(i)
    a('v_bfe_u32 v4, v0, 5, 1')
    a('v_and_b32 v5, 31, v0')
    a('v_lshlrev_b32 v6, 14, v4')
    a('v_lshl_add_u32 v6, v5, 1, v6')
    a('v_lshlrev_b32 v7, 4, v4')
    a('s_lshl_b32 s34, s25, 5')
    a('v_add_u32 v8, s34, v5')
    a('v_mul_u32_u24 v8, 896, v8')
    a('v_lshl_add_u32 v8, v4, 3, v8')
    a('s_lshl_b32 s34, s26, 6')
    a('v_add_u32 v8, s34, v8')
    a('s_lshl_b32 s34, s26, 17')
    a('s_lshl_b32 s35, s25, 6')
    a('s_add_u32 s34, s34, s35')
    a(f's_add_u32 s34, s34, {X1T}')
    a('s_lshl_b32 s35, s26, 7')
    a(f's_add_u32 s35, s35, {MOD + 5*448*4}')
    a('v_lshlrev_b32 v9, 4, v2')
    for sl in range(1, 4):
        a(f'v_xor_b32 v13, {sl}, v1')
        a('v_mul_u32_u24 v13, 12288, v13')
        a(f'v_add_u32 v{9+sl}, v13, v9')
    a('v_mul_u32_u24 v13, 12288, v1')
    a('v_add_u32 v9, v13, v9')
    ACC = 64
    XR = 16
    GB = 32
    epi = []
    for q in range(4):
        for r in range(4):
            epi.append((f's_add_u32 s38, s34, {(8*q+r)*4096}', f'buffer_load_ushort v{XR+4*q+r}, v6, s[16:19], s38 offen'))
    for q in range(4):
        epi.append((None, f'buffer_load_dwordx4 {v(GB+4*q,4)}, v7, s[16:19], s35 offen offset:{32*q}'))
    for i in range(28):
        if i in (0, 1, 4, 8, 12, 16, 20, 24): stamp(a)
        b = (i % RD)*16
        W0, H0, H1, W1 = a_(b,4), a_(b+4,4), a_(b+8,4), a_(b+12,4)
        c = lambda n: '0' if i == 0 else v(ACC+16*n, 16)
        wait_through((i, 1))
        a(f'v_mfma_f32_32x32x16_bf16 {v(ACC,16)}, {W0}, {H0}, {c(0)}')
        wait_through((i, 2))
        a(f'v_mfma_f32_32x32x16_bf16 {v(ACC+16,16)}, {W0}, {H1}, {c(1)}')
        wait_through((i, 3))
        a(f'v_mfma_f32_32x32x16_bf16 {v(ACC+32,16)}, {W1}, {H0}, {c(2)}')
        a(f'v_mfma_f32_32x32x16_bf16 {v(ACC+48,16)}, {W1}, {H1}, {c(3)}')
        if i + RD < 28: issue(i + RD)
        elif epi:
            for _ in range(4):
                if epi:
                    x, y = epi.pop(0)
                    if x: a(x)
                    a(y); order.append(('e', len(order)))
    assert not epi
    stamp(a)
    for sl in range(1, 4):
        for q in range(4):
            a(f'ds_write_b128 v{9+sl}, {v(ACC+16*sl+4*q,4)} offset:{(sl-1)*4096 + q*1024}')
    a('s_waitcnt lgkmcnt(0)')
    a('s_barrier')
    stamp(a)
    for n in range(12):
        a(f'ds_read_b128 {v(ACC+16+4*n,4)}, v9 offset:{n*1024}')
    a('s_waitcnt vmcnt(0)')
    for i in range(16): a(f'v_lshlrev_b32 v{XR+i}, 16, v{XR+i}')
    for sl in range(3):
        a(f's_waitcnt lgkmcnt({8-4*sl})')
        for i in range(16):
            a(f'v_add_f32 v{ACC+i}, v{ACC+i}, v{ACC+16+16*sl+i}')
    for i in range(0, 16, 2): rb2(a, ACC+i, ACC+i+1, 48 + ((i >> 1) & 3))
    for i in range(16): a(f'v_mul_f32 v{ACC+i}, v{ACC+i}, v{GB+i}')
    for i in range(0, 16, 2): rb2(a, ACC+i, ACC+i+1, 48 + ((i >> 1) & 3))
    for i in range(16): a(f'v_add_f32 v{ACC+i}, v{ACC+i}, v{XR+i}')
    for i in range(8): a(f'v_cvt_pk_bf16_f32 v{52+i}, v{ACC+2*i}, v{ACC+2*i+1}')
    for q in range(4):
        a(f'buffer_store_dwordx2 {v(52+2*q,2)}, v8, s[12:15], 0 offen offset:{16*q}')
    stamp_end(a, 3)
    a.label('k4_end')
    a('s_endpgm')
    a.end_kernel(nm, denorm=False)
    a.launch(nm, 224, 256, K4_LDS)

HEADER = open('adaLN_cond__ssm_conv_s4__glu_gated_reglu__prompt.s.ref').read().split('; Override launch')[0]
def build(fn, **kw):
    P.update(kw)
    a = Asm()
    for ch in str(P.get('ks', '1234')):
        {'1': k1, '2': k2, '3': k3, '4': k4}[ch](a)
    a.label('code_end')
    open(fn, 'w').write(a.text(HEADER))
    print('nops inserted', a.nops)

if __name__ == '__main__':
    out = sys.argv[1] if len(sys.argv) > 1 else 'v1.s'
    kw = {}
    for x in sys.argv[2:]:
        k, val = x.split('=')
        kw[k] = int(val) if val.lstrip('-').isdigit() else val
    build(out, **kw)
```

```python
import sys, math
from asmlib import Asm, v, a_, s, fhex

L, D, NM, F = 2048, 448, 256, 1792
ZX  = 0x0000000
KR  = 0x0380000
X1T = 0x0540000
MOD = 0x0700000
WD  = 0x0710000
WP  = 0x08A0000
HID = 0x0C00000
WSZ = 0x1300000
LOG2E = 1.4426950408889634
P = dict(CH=2, g1map='2x14', RD=12, PRE=20)

def srd(a, sd, sb, nbytes):
    a(f's_mov_b32 s{sd}, s{sb}')
    a(f's_mov_b32 s{sd+1}, s{sb+1}')
    a(f's_mov_b32 s{sd+2}, {hex(nbytes)}')
    a(f's_mov_b32 s{sd+3}, 0x20000')

def cmul(a, d, x, e, t):
    a(f'v_pk_mul_f32 {v(t,2)}, {v(x,2)}, {v(e,2)} op_sel:[0,0] op_sel_hi:[1,0]')
    a(f'v_pk_fma_f32 {v(d,2)}, {v(x,2)}, {v(e,2)}, {v(t,2)} op_sel:[1,1,0] op_sel_hi:[0,1,1] neg_lo:[1,0,0]')

def rb1(a, r):
    a(f'v_cvt_pk_bf16_f32 v{r}, v{r}, v{r}')
    a(f'v_and_b32 v{r}, 0xffff0000, v{r}')

def rb2(a, r0, r1, t):
    a(f'v_cvt_pk_bf16_f32 v{t}, v{r0}, v{r1}')
    a(f'v_lshlrev_b32 v{r0}, 16, v{t}')
    a(f'v_and_b32 v{r1}, 0xffff0000, v{t}')

STAMPS = 0x1400000
class St:
    n = 0
def stamp(a):
    if not P.get('stamp'): return
    a(f's_memrealtime s[{60+2*St.n}:{61+2*St.n}]')
    St.n += 1
    assert St.n <= 14
def stamp_begin(a):
    St.n = 0
    if P.get('dstamp'):
        a('s_memrealtime s[60:61]')
        a('s_load_dwordx2 s[62:63], s[0:1], 128')
    if not P.get('stamp'): return
    a('s_memtime s[96:97]')
    stamp(a)
def stamp_end(a, kidx):
    if P.get('dstamp'):
        lab = f'dst_{len(a.lines)}'
        a('s_waitcnt vmcnt(0) lgkmcnt(0)')
        a('s_memrealtime s[64:65]')
        a('s_and_b32 s66, s2, 15')
        a('s_cmp_lg_u32 s66, 5')
        a(f's_cbranch_scc1 {lab}')
        a(f's_add_u32 s62, s62, {512*(3-kidx)}')
        a('s_addc_u32 s63, s63, 0')
        a('v_cmp_eq_u32 vcc, 0, v0')
        a('s_and_saveexec_b64 s[66:67], vcc')
        a(f's_cbranch_execz {lab}')
        a('v_mov_b32 v1, 0')
        a('s_waitcnt lgkmcnt(0)')
        a('v_mov_b32 v2, s64')
        a(f'global_atomic_umax v1, v2, s[62:63] offset:{16*kidx+4}')
        a('s_not_b32 s60, s60')
        a('v_mov_b32 v2, s60')
        a(f'global_atomic_umax v1, v2, s[62:63] offset:{16*kidx}')
        a('s_not_b32 s64, s64')
        a('v_mov_b32 v2, s64')
        a(f'global_atomic_umax v1, v2, s[62:63] offset:{16*kidx+8}')
        a.label(lab)
    if P.get('stamp'):
        a('s_waitcnt vmcnt(0) lgkmcnt(0)')
        stamp(a)
        a('s_memtime s[98:99]')
        a('v_lshrrev_b32 v1, 6, v0')
        a('s_lshl_b32 s58, s2, 8')
        a(f's_add_u32 s58, s58, {STAMPS + kidx*1024*256}')
        a('v_lshl_add_u32 v1, v1, 6, s58')
        a('s_waitcnt lgkmcnt(0)')
        a('s_sub_u32 s98, s98, s96')
        for k in range(St.n):
            a(f'v_mov_b32 v2, s{60+2*k}')
            a(f'global_store_dword v1, v2, s[4:5] offset:{4*k}')
        a('v_mov_b32 v2, s98')
        a(f'global_store_dword v1, v2, s[4:5] offset:60')
        a(f'v_mov_b32 v2, {St.n}')
        a(f'global_store_dword v1, v2, s[4:5] offset:56')
    a('s_endpgm')

N_KG, N_LN, N_MOD, N_WD = 448, 128, 84, 56
K1_LDS = 39040
def k1(a):
    nm = 'k1_kernel'
    a.begin_kernel(nm)
    stamp_begin(a)
    tot = N_KG + N_LN + N_MOD + N_WD
    NPF = P.get('npf', 0)
    if NPF:
        a(f's_cmp_ge_u32 s2, {NPF}')
        a('s_cbranch_scc1 k1_main')
        parts = NPF // 8
        a('s_getpc_b64 s[8:9]')
        a.label('k1_pf_pc')
        a('s_sub_u32 s8, s8, k1_pf_pc-k1_kernel')
        a('s_subb_u32 s9, s9, 0')
        a('s_lshr_b32 s3, s2, 3')
        a('s_lshl_b32 s3, s3, 12')
        a('v_lshl_add_u32 v1, v0, 4, s3')
        a('s_mov_b32 s6, code_end-k1_kernel-16')
        nld = P.get('pfn', 8)
        for i in range(nld):
            a(f'v_min_u32 v2, s6, v1')
            a(f'global_load_dwordx4 {v(4+4*i,4)}, v2, s[8:9]')
            a(f'v_add_u32 v1, {4096*parts}, v1')
        a('s_waitcnt vmcnt(0)')
        a('s_endpgm')
        a.label('k1_main'); a.hist = []
        a(f's_sub_u32 s2, s2, {NPF}')
    a(f's_cmp_ge_u32 s2, {tot}')
    a('s_cbranch_scc1 k1_end')
    a('s_load_dwordx2 s[4:5], s[0:1], 136')
    a(f's_cmp_ge_u32 s2, {N_KG + N_LN + N_MOD}')
    a('s_cbranch_scc1 k1_wd')
    a(f's_cmp_ge_u32 s2, {N_KG + N_LN}')
    a('s_cbranch_scc1 k1_mod')
    a(f's_cmp_ge_u32 s2, {N_KG}')
    a('s_cbranch_scc1 k1_ln')
    FT = 34816
    a('s_load_dwordx16 s[8:23], s[0:1], 8')
    a('s_lshl_b32 s3, s2, 9')
    a('v_lshl_add_u32 v1, v0, 1, s3')
    a('s_lshl_b32 s6, s2, 1')
    a('v_mov_b32 v9, s6')
    a('s_waitcnt lgkmcnt(0)')
    for i in range(6):
        a(f'global_load_ushort v{2+i}, v1, s[{8+2*i}:{9+2*i}]')
    a('global_load_ushort v8, v9, s[20:21]')
    a('v_lshlrev_b32 v24, 3, v0')
    for e in range(0, 8, 2):
        a(f'v_sub_u32 v25, {2047-e}, v24')
        a(f'v_sub_u32 v26, {2047-e-1}, v24')
        a('v_cvt_f32_u32 v25, v25')
        a('v_cvt_f32_u32 v26, v26')
        rb2(a, 25, 26, 27)
        a('v_cvt_u32_f32 v25, v25')
        a('v_cvt_u32_f32 v26, v26')
        for (u, dst) in ((25, 10+e), (26, 11+e)):
            a(f'v_and_b32 v28, 0xf00, v{u}')
            a(f'v_and_b32 v29, 7, v{u}')
            a(f'v_lshrrev_b32 v30, 2, v{u}')
            a('v_and_b32 v30, 0x3e, v30')
            a('v_lshl_or_b32 v28, v28, 1, v30')
            a(f'v_lshl_or_b32 v{dst}, v29, 6, v28')
    a('v_lshrrev_b32 v24, 6, v0')
    a('v_mul_u32_u24 v24, 8704, v24')
    a('v_and_b32 v25, 63, v0')
    a('v_lshl_add_u32 v20, v25, 2, v24')
    a('v_and_b32 v26, 31, v0')
    a('v_bfe_u32 v27, v0, 5, 1')
    a('v_mul_u32_u24 v28, 272, v26')
    a('v_lshl_add_u32 v28, v27, 4, v28')
    a('v_add_u32 v21, v28, v24')
    a('v_mul_u32_u24 v28, 144, v26')
    a('v_lshl_add_u32 v28, v27, 4, v28')
    a('v_add_u32 v22, v28, v24')
    a('v_lshrrev_b32 v26, 3, v0')
    a('v_and_b32 v27, 7, v0')
    a('v_mul_u32_u24 v28, 144, v26')
    a('v_lshl_add_u32 v18, v27, 4, v28')
    a('v_lshlrev_b32 v28, 1, v26'); a('v_subrev_u32 v28, 8, v28')
    a('v_lshlrev_b32 v29, 2, v26'); a('v_subrev_u32 v29, 32, v29')
    a('v_lshlrev_b32 v30, 3, v26'); a('v_subrev_u32 v30, 96, v30')
    a('v_max3_i32 v28, v26, v28, v29')
    a('v_max_i32 v28, v28, v30')
    a('v_min_i32 v28, 65, v28')
    a('v_lshlrev_b32 v28, 6, v28')
    a('v_lshl_add_u32 v19, v27, 3, v28')
    a('s_lshl_b32 s3, s2, 12')
    a(f's_add_u32 s3, s3, {KR}')
    a('v_lshl_add_u32 v23, v0, 4, s3')
    stamp(a)
    a('s_waitcnt vmcnt(0)')
    stamp(a)
    for i in range(7):
        a(f'v_lshlrev_b32 v{2+i}, 16, v{2+i}')
    Lhi = LOG2E
    import struct
    Lf = struct.unpack('<f', struct.pack('<f', LOG2E))[0]
    Llo = LOG2E - Lf
    a(f's_mov_b32 s24, {fhex(Lf)}')
    a(f's_mov_b32 s25, {fhex(Llo)}')
    a(f's_mov_b32 s26, {fhex(math.log(2.0))}')
    a('v_mul_f32 v24, s24, v8')
    a('v_fma_f32 v25, v8, s24, -v24')
    a('v_fma_f32 v25, v8, s25, v25')
    a('v_exp_f32 v24, v24')
    a('v_mul_f32 v25, s26, v25')
    a('v_fma_f32 v8, v24, v25, v24')
    rb1(a, 8)
    a('v_mul_f32 v2, v8, v2')
    a('v_mul_f32 v3, v8, v3')
    a('v_mul_f32 v4, v8, v4')
    a('v_mul_f32 v5, v8, v5')
    a('v_mul_f32 v2, s24, v2')
    a('v_mul_f32 v3, 0.15915494309189532, v3')
    def direct(dst, mult, conj):
        if mult == 1:
            a('v_exp_f32 v24, v2'); a('v_fract_f32 v25, v3')
        else:
            a(f'v_mul_f32 v24, {fhex(float(mult))}, v2')
            a(f'v_mul_f32 v25, {fhex(float(mult))}, v3')
            a('v_exp_f32 v24, v24'); a('v_fract_f32 v25, v25')
        a('v_cos_f32 v26, v25')
        a('v_sin_f32 v27, v25')
        a(f'v_mul_f32 v{dst}, v24, v26')
        if conj: a(f'v_mul_f32 v{dst+1}, -v24, v27')
        else: a(f'v_mul_f32 v{dst+1}, v24, v27')
    direct(34, 8, False)
    E1, E256 = 58, 60
    direct(E1, 1, True)
    direct(E256, 256, True)
    a('v_mov_b32 v32, 1.0'); a('v_mov_b32 v33, 0')
    cmul(a, 36, 34, 34, 50)
    cmul(a, 38, 36, 34, 52)
    cmul(a, 48, 36, 36, 54)
    cur, nxt = 32, 40
    for blk in range(8):
        for c in range(4):
            a(f'v_cvt_pk_bf16_f32 v{28+c}, v{cur+2*c}, v{cur+2*c+1}')
        if blk < 7:
            for c in range(4):
                cmul(a, nxt+2*c, cur+2*c, 48, 50+2*c)
        for c in range(4):
            a(f'ds_write_b32 v20, v{28+c} offset:{(blk*4+c)*272}')
        cur, nxt = nxt, cur
    stamp(a)
    for st in range(8):
        a(f'ds_read_b128 {v(64+4*st,4)}, v21 offset:{32*st}')
    X = lambda i: 96 + 0
    xr = {}
    pool = list(range(32, 48, 2)) + [96, 98, 100, 102, 104, 106]
    def newx(i):
        xr[i] = pool.pop(0); return xr[i]
    def freex(i): pool.append(xr.pop(i))
    def wr(i):
        t = 28 + (i & 3)
        a(f'v_cvt_pk_bf16_f32 v{t}, v{xr[i]}, v{xr[i]+1}')
        a(f'ds_write_b32 v20, v{t} offset:{i*272}')
    x0 = newx(0)
    a(f'v_mul_f32 v{x0}, v6, v4')
    a(f'v_mul_f32 v{x0+1}, -v6, v5')
    a(f'v_fma_f32 v{x0}, -v7, v5, v{x0}')
    a(f'v_fma_f32 v{x0+1}, -v7, v4, v{x0+1}')
    E2 = 62
    cmul(a, E2, E1, E1, 50)
    cmul(a, newx(1), xr[0], E1, 52)
    tt = [50, 52, 54, 56]
    k = 0
    for i in range(2, 8):
        cmul(a, newx(i), xr[i-2], E2, tt[k & 3]); k += 1
    for i in range(8): wr(i)
    for i in (1, 3, 5, 7): freex(i)
    for j, src in enumerate((0, 2, 4, 6)):
        cmul(a, newx(8+j), xr[src], E256, tt[j])
    for i in (0, 2, 4, 6): freex(i)
    cmul(a, newx(12), xr[8], E256, 50)
    cmul(a, newx(13), xr[10], E256, 52)
    for i in range(8, 12): wr(i)
    cmul(a, newx(14), xr[12], E256, 54)
    cmul(a, newx(15), xr[13], E256, 56)
    for i in range(8, 12): freex(i)
    wr(12); wr(13)
    cmul(a, newx(16), xr[14], E256, 50)
    wr(14); wr(15)
    for i in range(17, 21):
        cmul(a, newx(i), xr[i-1], E256, tt[i & 3])
        wr(i-1)
    wr(20)
    stamp(a)
    for st in range(8):
        a(f'ds_read_b128 {v(32+4*st,4)}, v21 offset:{32*st}')
    ACC = 96
    for st in range(8):
        a(f's_waitcnt lgkmcnt({7-st})')
        a(f'v_mfma_f32_32x32x16_bf16 {v(ACC,16)}, {v(64+4*st,4)}, {v(32+4*st,4)}, {"0" if st == 0 else v(ACC,16)}')
    for q in range(4):
        a(f'ds_write_b128 v22, {v(ACC+4*q,4)} offset:{32*q}')
    a('s_waitcnt lgkmcnt(0)')
    a('s_barrier')
    stamp(a)
    for w in range(4):
        a(f'ds_read_b128 {v(32+4*w,4)}, v18 offset:{8704*w}')
    a('s_waitcnt lgkmcnt(2)')
    for e in range(4): a(f'v_add_f32 v{32+e}, v{32+e}, v{36+e}')
    a('s_waitcnt lgkmcnt(0)')
    for e in range(4): a(f'v_add_f32 v{40+e}, v{40+e}, v{44+e}')
    for e in range(4): a(f'v_add_f32 v{32+e}, v{32+e}, v{40+e}')
    a('v_cvt_pk_bf16_f32 v36, v32, v33')
    a('v_cvt_pk_bf16_f32 v37, v34, v35')
    a(f'ds_write_b64 v19, v[36:37] offset:{FT}')
    a('s_waitcnt lgkmcnt(0)')
    a('s_barrier')
    stamp(a)
    for e in range(8):
        a(f'ds_read_u16 v{40+e}, v{10+e} offset:{FT}')
    a('s_waitcnt lgkmcnt(0)')
    for e in range(4):
        a(f'v_lshl_or_b32 v{32+e}, v{41+2*e}, 16, v{40+2*e}')
    a('global_store_dwordx4 v23, v[32:35], s[4:5]')
    stamp_end(a, 0)

    a.label('k1_ln'); a.hist = []
    St.n = 1
    a('s_load_dwordx2 s[8:9], s[0:1], 0')
    a(f's_sub_u32 s3, s2, {N_KG}')
    a('s_lshl_b32 s3, s3, 4')
    a('v_lshrrev_b32 v1, 4, v0')
    a('v_and_b32 v2, 15, v0')
    a('v_add_u32 v3, s3, v1')
    a('v_mul_u32_u24 v3, 896, v3')
    a('v_lshl_add_u32 v3, v2, 3, v3')
    a('s_waitcnt lgkmcnt(0)')
    for j in range(7):
        a(f'global_load_dwordx2 {v(10+2*j,2)}, v3, s[8:9] offset:{128*j}')
    a('v_mul_u32_u24 v4, 272, v2')
    a('v_lshl_add_u32 v4, v1, 2, v4')
    a('v_lshrrev_b32 v5, 2, v0')
    a('v_and_b32 v6, 3, v0')
    a('v_add_u32 v7, v1, v6')
    a('v_lshlrev_b32 v7, 4, v7')
    a('v_lshl_add_u32 v7, v5, 6, v7')
    a('s_lshl_b32 s6, s3, 2')
    a('v_lshlrev_b32 v8, 13, v5')
    a('v_lshl_add_u32 v8, v6, 4, v8')
    a('v_add_u32 v8, s6, v8')
    srd(a, 12, 4, WSZ)
    XV = 32
    for j in range(7):
        a(f's_waitcnt vmcnt({6-j})')
        for e2 in range(2):
            a(f'v_lshlrev_b32 v{XV+4*j+2*e2}, 16, v{10+2*j+e2}')
            a(f'v_and_b32 v{XV+4*j+2*e2+1}, 0xffff0000, v{10+2*j+e2}')
    for c in range(4):
        a(f'v_add_f32 v{24+c}, v{XV+c}, v{XV+4+c}')
    for j in range(2, 7):
        for c in range(4):
            a(f'v_add_f32 v{24+c}, v{24+c}, v{XV+4*j+c}')
    a('v_add_f32 v24, v24, v25'); a('v_add_f32 v26, v26, v27'); a('v_add_f32 v24, v24, v26')
    def allred16(r):
        for m in ('quad_perm:[1,0,3,2]', 'quad_perm:[2,3,0,1]', 'row_half_mirror', 'row_mirror'):
            a(f'v_add_f32_dpp v{r}, v{r}, v{r} {m} row_mask:0xf bank_mask:0xf')
    allred16(24)
    a(f'v_mul_f32 v24, {fhex(1.0/448)}, v24')
    for i in range(28):
        a(f'v_sub_f32 v{64+i}, v{XV+i}, v24')
    for c in range(4):
        a(f'v_mul_f32 v{26+c}, v{64+c}, v{64+c}')
    for i in range(4, 28):
        a(f'v_fmac_f32 v{26+(i&3)}, v{64+i}, v{64+i}')
    a('v_add_f32 v26, v26, v27'); a('v_add_f32 v28, v28, v29'); a('v_add_f32 v26, v26, v28')
    allred16(26)
    a(f'v_mul_f32 v26, {fhex(1.0/448)}, v26')
    rb2(a, 24, 26, 27)
    a(f'v_add_f32 v26, {fhex(1e-5)}, v26')
    rb1(a, 26)
    a('v_sqrt_f32 v26, v26')
    rb1(a, 26)
    a('v_rcp_f32 v26, v26')
    for i in range(0, 28, 2):
        a(f'v_sub_f32 v{64+i}, v{XV+i}, v24')
        a(f'v_sub_f32 v{65+i}, v{XV+i+1}, v24')
    for i in range(0, 28, 2):
        rb2(a, 64+i, 65+i, 28 + ((i >> 1) & 3))
    for i in range(28):
        a(f'v_mul_f32 v{64+i}, v{64+i}, v26')
    for i in range(28):
        a(f'v_cvt_pk_bf16_f32 v{64+i}, v{64+i}, v{XV+i}')
        a(f'ds_write_b32 v4, v{64+i} offset:{(i>>2)*4352 + (i&3)*64}')
    a('s_waitcnt lgkmcnt(0)')
    a('s_barrier')
    stamp(a)
    for i in range(7):
        a(f'ds_read_b128 {v(32+4*i,4)}, v7 offset:{4352*i}')
    for i in range(7):
        a(f's_mov_b32 s7, {hex(ZX + 0x80000*i)}')
        a(f's_waitcnt lgkmcnt({6-i})')
        a(f'buffer_store_dwordx4 {v(32+4*i,4)}, v8, s[12:15], s7 offen')
    stamp_end(a, 0)

    a.label('k1_mod'); a.hist = []
    St.n = 1
    a('s_load_dwordx4 s[8:11], s[0:1], 104')
    a(f's_sub_u32 s3, s2, {N_KG + N_LN}')
    a('s_lshl_b32 s6, s3, 6')
    a('v_and_b32 v1, 3, v0')
    a('v_lshrrev_b32 v2, 2, v0')
    a('v_mul_u32_u24 v3, 5376, v2')
    a('v_lshl_add_u32 v3, v1, 4, v3')
    a('v_add_u32 v3, s6, v3')
    a('v_lshlrev_b32 v4, 1, v2')
    a('s_waitcnt lgkmcnt(0)')
    srd(a, 12, 10, 448*2688*2)
    for i in range(7):
        a(f'global_load_ushort v{10+i}, v4, s[8:9] offset:{128*i}')
    for i in range(7):
        a(f's_mov_b32 s7, {344064*i}')
        a(f'buffer_load_dwordx4 {v(32+4*i,4)}, v3, s[12:15], s7 offen')
    a('v_lshrrev_b32 v5, 4, v0')
    a('v_lshlrev_b32 v5, 7, v5')
    a('v_lshl_add_u32 v5, v1, 5, v5')
    a('v_and_b32 v6, 31, v0')
    a('v_lshlrev_b32 v6, 2, v6')
    a('s_waitcnt vmcnt(7)')
    for i in range(7):
        a(f'v_lshlrev_b32 v{10+i}, 16, v{10+i}')
    for i in range(7):
        a(f'v_mul_f32 v{20+i}, {fhex(-LOG2E)}, v{10+i}')
    for i in range(7): a(f'v_exp_f32 v{20+i}, v{20+i}')
    for i in range(7): a(f'v_add_f32 v{20+i}, 1.0, v{20+i}')
    for i in range(7): a(f'v_rcp_f32 v{20+i}, v{20+i}')
    for i in range(7): a(f'v_mul_f32 v{10+i}, v{10+i}, v{20+i}')
    for i in range(7): rb1(a, 10+i)
    ACC = 64
    for i in range(7):
        a(f's_waitcnt vmcnt({6-i})')
        for j in range(4):
            a(f'v_lshlrev_b32 v{20+2*j}, 16, v{32+4*i+j}')
            a(f'v_and_b32 v{21+2*j}, 0xffff0000, v{32+4*i+j}')
        for j in range(8):
            if i == 0: a(f'v_mul_f32 v{ACC+j}, v{20+j}, v{10+i}')
            else: a(f'v_fmac_f32 v{ACC+j}, v{20+j}, v{10+i}')
    for m in ('row_ror:4', 'row_ror:8'):
        for j in range(8):
            a(f'v_add_f32_dpp v{ACC+j}, v{ACC+j}, v{ACC+j} {m} row_mask:0xf bank_mask:0xf')
    a(f'ds_write_b128 v5, {v(ACC,4)}')
    a(f'ds_write_b128 v5, {v(ACC+4,4)} offset:16')
    a('s_waitcnt lgkmcnt(0)')
    a('s_barrier')
    stamp(a)
    a('v_cmp_gt_u32 vcc, 32, v0')
    a('s_and_saveexec_b64 s[16:17], vcc')
    a('s_cbranch_execz k1_end')
    for i in range(16):
        a(f'ds_read_b32 v{32+i}, v6 offset:{128*i}')
    a('s_lshl_b32 s6, s3, 7')
    a(f's_add_u32 s6, s6, {MOD}')
    a('v_add_u32 v7, s6, v6')
    a('s_waitcnt lgkmcnt(0)')
    for st in (8, 4, 2, 1):
        for i in range(st):
            a(f'v_add_f32 v{32+i}, v{32+i}, v{32+st+i}')
    rb1(a, 32)
    a('global_store_dword v7, v32, s[4:5]')
    stamp_end(a, 0)

    a.label('k1_wd'); a.hist = []
    St.n = 1
    a('s_load_dwordx2 s[8:9], s[0:1], 96')
    a(f's_sub_u32 s3, s2, {N_KG + N_LN + N_MOD}')
    a('v_lshrrev_b32 v1, 6, v0')
    a('v_and_b32 v2, 63, v0')
    a('v_readfirstlane_b32 s20, v1')
    a('v_lshlrev_b32 v3, 4, v2')
    a('s_mul_i32 s21, s20, 7168')
    a('s_mul_i32 s6, s3, 28672')
    a('s_add_u32 s6, s6, s21')
    a('s_waitcnt lgkmcnt(0)')
    srd(a, 12, 8, 1792*448*2)
    srd(a, 16, 4, WSZ)
    for i in range(7):
        if i % 4 == 0:
            a(f's_add_u32 m0, s21, {i*1024}')
            a(f's_add_u32 s7, s6, {i*1024}')
        a(f'buffer_load_dwordx4 v3, s[12:15], s7 offen offset:{(i%4)*1024} lds')
    a('v_bfe_u32 v4, v0, 5, 1')
    a('v_bfe_u32 v5, v0, 2, 2')
    a('v_lshl_add_u32 v4, v4, 2, v5')
    a('v_and_b32 v5, 1, v1')
    a('v_lshl_add_u32 v4, v5, 4, v4')
    a('v_mul_u32_u24 v4, 896, v4')
    a('v_bfe_u32 v6, v0, 4, 1')
    a('v_and_b32 v7, 3, v0')
    a('v_lshl_add_u32 v4, v6, 5, v4')
    a('v_lshl_add_u32 v4, v7, 3, v4')
    a('v_lshrrev_b32 v6, 1, v1')
    a('v_mul_u32_u24 v7, 448, v6')
    a('v_add_u32 v4, v4, v7')
    a('v_mul_u32_u24 v7, 784, v6')
    a('v_add_u32 v7, v7, v5')
    a('v_lshl_add_u32 v8, v7, 10, v3')
    a('s_lshl_b32 s22, s3, 11')
    a(f's_add_u32 s22, s22, {WD}')
    a('s_waitcnt vmcnt(0)')
    a('s_barrier')
    stamp(a)
    for i in range(7):
        a(f'ds_read_b64_tr_b16 {v(32+4*i,2)}, v4 offset:{64*i}')
        a(f'ds_read_b64_tr_b16 {v(34+4*i,2)}, v4 offset:{64*i+7168}')
    for i in range(7):
        a(f's_add_u32 s7, s22, {i*112*1024}')
        a(f's_waitcnt lgkmcnt({12-2*i})')
        a(f'buffer_store_dwordx4 {v(32+4*i,4)}, v8, s[16:19], s7 offen')
    stamp_end(a, 0)
    a.label('k1_end')
    a('s_endpgm')
    a.end_kernel(nm, denorm=False)
    a.launch(nm, tot + NPF, 256, K1_LDS)

N_CV, N_PP = 448, 112
UB = 33280
K2_LDS = UB + 96*80
def k2(a):
    nm = 'k2_kernel'
    a.begin_kernel(nm)
    stamp_begin(a)
    tot = N_CV + N_PP
    a(f's_cmp_ge_u32 s2, {tot}')
    a('s_cbranch_scc1 k2_end')
    a('s_load_dwordx2 s[4:5], s[0:1], 136')
    a(f's_cmp_ge_u32 s2, {N_CV}')
    a('s_cbranch_scc1 k2_prep')
    a('s_load_dwordx2 s[8:9], s[0:1], 64')
    a('s_lshl_b32 s3, s2, 13')
    a('v_lshl_add_u32 v1, v0, 5, s3')
    a('v_lshlrev_b32 v2, 4, v0')
    a('s_lshl_b32 s6, s2, 12')
    a('s_lshl_b32 s7, s2, 2')
    a(f's_add_u32 s7, s7, {MOD}')
    a('s_waitcnt lgkmcnt(0)')
    a('global_load_dwordx4 v[8:11], v1, s[4:5]')
    a('global_load_dwordx4 v[12:15], v1, s[4:5] offset:16')
    a(f's_add_u32 s10, s6, {KR}')
    a('s_add_u32 s12, s4, s10')
    a('s_addc_u32 s13, s5, 0')
    a('s_mov_b32 s14, 4096')
    a('s_mov_b32 s15, 0x20000')
    a('buffer_load_dwordx4 v[16:19], v2, s[12:15], 0 offen')
    a('buffer_load_dwordx4 v[20:23], v2, s[12:15], 0 offen offset:16')
    a('s_add_u32 s16, s4, s7')
    a('s_addc_u32 s17, s5, 0')
    a('s_load_dword s20, s[16:17], 0')
    a(f's_load_dword s21, s[16:17], {448*4}')
    a(f's_load_dword s22, s[16:17], {2*448*4}')
    a('s_lshl_b32 s10, s2, 1')
    a('s_and_b32 s11, s10, 0xfffffffc')
    a('s_add_u32 s8, s8, s11')
    a('s_addc_u32 s9, s9, 0')
    a('s_load_dword s23, s[8:9], 0')
    for i in range(4): a(f'v_mov_b32 v{24+i}, 0')
    a('v_cmp_gt_u32 vcc, 160, v0')
    a('s_and_saveexec_b64 s[18:19], vcc')
    a(f'ds_write_b128 v2, v[24:27] offset:{UB}')
    a('s_mov_b64 exec, s[18:19]')
    a('v_and_b32 v3, 7, v0')
    a('v_mul_u32_u24 v3, 4160, v3')
    a('v_lshrrev_b32 v4, 3, v0')
    a('v_lshl_add_u32 v3, v4, 4, v3')
    a('v_cmp_gt_u32 vcc, 24, v0')
    a('s_and_saveexec_b64 s[18:19], vcc')
    a('ds_write_b128 v3, v[24:27] offset:4096')
    a('s_mov_b64 exec, s[18:19]')
    a('v_lshrrev_b32 v3, 2, v0')
    a('v_mul_u32_u24 v3, 80, v3')
    a('v_and_b32 v4, 3, v0')
    a('v_lshl_add_u32 v3, v4, 4, v3')
    a('v_lshrrev_b32 v28, 6, v0')
    a('v_and_b32 v29, 7, v0')
    a('v_bfe_u32 v30, v0, 3, 2')
    a('v_bfe_u32 v31, v0, 5, 1')
    a('v_mul_u32_u24 v4, 4160, v29')
    a('v_sub_u32 v5, v31, v30')
    a('v_lshl_add_u32 v4, v5, 4, v4')
    a('v_lshlrev_b32 v5, 9, v28')
    a('v_sub_u32 v4, v4, v5')
    a(f'v_add_u32 v4, {4080 - 32*78}, v4')
    a('v_and_b32 v29, 31, v0')
    a('v_lshlrev_b32 v5, 3, v28')
    a('v_sub_u32 v5, v29, v5')
    a('v_add_u32 v5, 25, v5')
    a('v_mul_u32_u24 v5, 80, v5')
    a('v_lshl_add_u32 v5, v31, 4, v5')
    a('v_bfe_u32 v30, v0, 1, 2')
    a('v_and_b32 v6, 1, v0')
    a('v_lshl_or_b32 v30, v6, 2, v30')
    a('v_xor_b32 v30, v30, v31')
    a('v_lshlrev_b32 v6, 13, v28')
    a('v_lshl_add_u32 v6, v29, 7, v6')
    PW = 96
    for q in range(4):
        a(f'v_xor_b32 v7, {2*q}, v30')
        a(f'v_lshl_add_u32 v{PW+q}, v7, 4, v6')
    a('v_bfe_u32 v30, v0, 3, 2')
    a('v_bfe_u32 v6, v0, 2, 1')
    a('v_lshl_or_b32 v30, v6, 2, v30')
    a('v_and_b32 v6, 3, v0')
    a('v_lshlrev_b32 v6, 1, v6')
    a('v_xor_b32 v30, v30, v6')
    a('v_lshrrev_b32 v6, 2, v0')
    a('v_lshlrev_b32 v6, 7, v6')
    a('v_lshl_add_u32 v100, v30, 4, v6')
    a('v_xor_b32 v30, 1, v30')
    a('v_lshl_add_u32 v101, v30, 4, v6')
    a(f's_add_u32 s6, s6, {X1T}')
    a('v_add_u32 v102, s6, v2')
    a('s_waitcnt lgkmcnt(0)')
    a('v_add_f32 v6, 1.0, s21') if False else a('v_mov_b32 v6, s21')
    a('v_add_f32 v6, 1.0, v6')
    rb1(a, 6)
    a('s_bitcmp1_b32 s2, 0')
    a('s_lshl_b32 s24, s23, 16')
    a('s_and_b32 s25, s23, 0xffff0000')
    a('s_bitcmp1_b32 s2, 0')
    a('s_cselect_b32 s23, s25, s24')
    stamp(a)
    a('s_waitcnt vmcnt(2)')
    stamp(a)
    H = 104
    for e in range(8):
        a(f'v_lshlrev_b32 v{32+e}, 16, v{8+e}')
    for e in range(8):
        a(f'v_mul_f32 v{32+e}, v{32+e}, v6')
    for e in range(0, 8, 2):
        rb2(a, 32+e, 33+e, 40 + (e >> 1))
    for e in range(8):
        a(f'v_add_f32 v{32+e}, s20, v{32+e}')
    for e in range(4):
        a(f'v_cvt_pk_bf16_f32 v{H+e}, v{32+2*e}, v{33+2*e}')
    a(f'ds_write_b128 v3, {v(H,4)} offset:{UB+2560}')
    a('s_waitcnt vmcnt(0)')
    G = 16; G1 = 32; O = 40; O1 = 48
    a(f'ds_write_b128 v2, {v(G,4)} offset:{7*4160}')
    a(f'ds_write_b128 v2, {v(G+2,4)} offset:{3*4160}')
    for k in range(6): a(f'v_mov_b32 v{G1+k}, v{G+1+k}')
    a(f'ds_write_b128 v2, {v(G1,4)} offset:{5*4160}')
    a(f'ds_write_b128 v2, {v(G1+2,4)} offset:{1*4160}')
    for k in range(6): a(f'v_alignbit_b32 v{O+k}, v{G+k+1}, v{G+k}, 16')
    a(f'ds_write_b128 v2, {v(O,4)} offset:{6*4160}')
    a(f'ds_write_b128 v2, {v(O+2,4)} offset:{2*4160}')
    for k in range(6): a(f'v_alignbit_b32 v{O1+k}, v{G+k+2}, v{G+k+1}, 16')
    a(f'ds_write_b128 v2, {v(O1,4)} offset:{4*4160}')
    a(f'ds_write_b128 v2, {v(O1+2,4)} offset:{0*4160}')
    a('s_waitcnt lgkmcnt(0)')
    a('s_barrier')
    stamp(a)
    A0, A1 = 64, 80
    FB = 16
    trip = [(dl, kk) for dl in range(8) for kk in range(2)]
    def loads(n):
        dl, kk = trip[n]
        qp = 2*dl - kk
        b = FB + (n % 3)*16
        oa = 32*(14 - qp)
        ob = UB + (7 - dl)*80 + 32*kk
        a(f'ds_read_b128 {v(b,4)}, v4 offset:{oa+2048}')
        a(f'ds_read_b128 {v(b+4,4)}, v5 offset:{ob}')
        a(f'ds_read_b128 {v(b+8,4)}, v5 offset:{ob+2560}')
        a(f'ds_read_b128 {v(b+12,4)}, v4 offset:{oa}')
    loads(0); loads(1)
    for n in range(16):
        if n + 2 < 16: loads(n + 2)
        rem = min(2, 15 - n) * 4
        b = FB + (n % 3)*16
        a(f's_waitcnt lgkmcnt({rem+2})')
        a(f'v_mfma_f32_32x32x16_bf16 {v(A0,16)}, {v(b,4)}, {v(b+4,4)}, {"0" if n == 0 else v(A0,16)}')
        a(f's_waitcnt lgkmcnt({rem+1})')
        a(f'v_mfma_f32_32x32x16_bf16 {v(A1,16)}, {v(b,4)}, {v(b+8,4)}, {"0" if n == 0 else v(A1,16)}')
        a(f's_waitcnt lgkmcnt({rem})')
        a(f'v_mfma_f32_32x32x16_bf16 {v(A1,16)}, {v(b+12,4)}, {v(b+4,4)}, {v(A1,16)}')
    a('s_barrier')
    stamp(a)
    for c, A in enumerate((A0, A1)):
        for q in range(4):
            a(f'ds_write_b128 v{PW+q}, {v(A+4*q,4)} offset:{4096*c}')
    a('s_waitcnt lgkmcnt(0)')
    a('s_barrier')
    stamp(a)
    for w in range(4):
        a(f'ds_read_b128 {v(16+8*w,4)}, v100 offset:{8192*w}')
        a(f'ds_read_b128 {v(20+8*w,4)}, v101 offset:{8192*w}')
    for e in range(4):
        a(f'v_lshlrev_b32 v{48+2*e}, 16, v{H+e}')
        a(f'v_and_b32 v{49+2*e}, 0xffff0000, v{H+e}')
    for e in range(8): a(f'v_mul_f32 v{48+e}, s23, v{48+e}')
    for e in range(0, 8, 2): rb2(a, 48+e, 49+e, 56 + (e >> 1))
    for e in range(8): a(f'v_and_b32 v{8+e}, 0xffff0000, v{8+e}')
    a('s_waitcnt lgkmcnt(4)')
    for e in range(8): a(f'v_add_f32 v{16+e}, v{16+e}, v{24+e}')
    a('s_waitcnt lgkmcnt(0)')
    for e in range(8): a(f'v_add_f32 v{32+e}, v{32+e}, v{40+e}')
    for e in range(8): a(f'v_add_f32 v{16+e}, v{16+e}, v{32+e}')
    for e in range(0, 8, 2): rb2(a, 16+e, 17+e, 56 + (e >> 1))
    for e in range(8): a(f'v_add_f32 v{16+e}, v{16+e}, v{48+e}')
    for e in range(0, 8, 2): rb2(a, 16+e, 17+e, 56 + (e >> 1))
    for e in range(8): a(f'v_mul_f32 v{16+e}, s22, v{16+e}')
    for e in range(0, 8, 2): rb2(a, 16+e, 17+e, 56 + (e >> 1))
    for e in range(8): a(f'v_add_f32 v{16+e}, v{16+e}, v{8+e}')
    for e in range(4): a(f'v_cvt_pk_bf16_f32 v{24+e}, v{16+2*e}, v{17+2*e}')
    a('global_store_dwordx4 v102, v[24:27], s[4:5]')
    stamp_end(a, 1)

    a.label('k2_prep'); a.hist = []
    St.n = 1
    SC = 28672
    a('s_load_dwordx4 s[8:11], s[0:1], 80')
    a(f's_sub_u32 s3, s2, {N_CV}')
    a('s_lshr_b32 s6, s3, 1')
    a('s_lshl_b32 s6, s6, 6')
    a('v_and_b32 v1, 3, v0')
    a('v_lshrrev_b32 v2, 2, v0')
    a('v_mul_u32_u24 v3, 3584, v2')
    a('v_lshl_add_u32 v3, v1, 4, v3')
    a('v_add_u32 v3, s6, v3')
    a('v_lshlrev_b32 v4, 2, v2')
    a('s_waitcnt lgkmcnt(0)')
    a('s_bitcmp1_b32 s3, 0')
    a('s_cselect_b32 s12, s10, s8')
    a('s_cselect_b32 s13, s11, s9')
    a(f's_mov_b32 s14, {448*1792*2}')
    a('s_mov_b32 s15, 0x20000')
    srd(a, 16, 4, WSZ)
    a(f's_mov_b32 s20, {MOD + 3*448*4}')
    a(f's_mov_b32 s21, {MOD + 4*448*4}')
    for i in range(7):
        a(f'buffer_load_dword v{10+i}, v4, s[16:19], s21 offen offset:{256*i}')
    for i in range(7):
        a(f'buffer_load_dword v{17+i}, v4, s[16:19], s20 offen offset:{256*i}')
    for i in range(7):
        a(f's_mov_b32 s7, {229376*i}')
        a(f'buffer_load_dwordx4 {v(32+4*i,4)}, v3, s[12:15], s7 offen')
    a('v_lshlrev_b32 v5, 4, v0')
    a('v_lshrrev_b32 v6, 4, v0')
    a('v_lshlrev_b32 v6, 8, v6')
    a('v_lshl_add_u32 v6, v1, 5, v6')
    a('v_lshrrev_b32 v24, 6, v0')
    a('v_bfe_u32 v7, v0, 5, 1')
    a('v_bfe_u32 v8, v0, 2, 2')
    a('v_lshl_add_u32 v7, v7, 3, v8')
    a('v_lshlrev_b32 v7, 6, v7')
    a('v_bfe_u32 v8, v0, 4, 1')
    a('v_lshl_add_u32 v7, v8, 5, v7')
    a('v_lshl_add_u32 v7, v1, 3, v7')
    a('v_mul_u32_u24 v8, 7168, v24')
    a('v_add_u32 v7, v7, v8')
    a('v_and_b32 v25, 63, v0')
    a('v_lshl_add_u32 v8, v25, 4, v8')
    a('v_lshlrev_b32 v9, 2, v25')
    a('v_readfirstlane_b32 s24, v24')
    a('s_mul_i32 s22, s3, 29696')
    a(f's_add_u32 s22, s22, {WP}')
    a('s_waitcnt vmcnt(14)')
    for i in range(7): a(f'v_add_f32 v{10+i}, 1.0, v{10+i}')
    for i in range(7): rb1(a, 10+i)
    S, B = 64, 72
    for i in range(7):
        a(f's_waitcnt vmcnt({6-i})')
        for j in range(4):
            a(f'v_lshlrev_b32 v{80+2*j}, 16, v{32+4*i+j}')
            a(f'v_and_b32 v{81+2*j}, 0xffff0000, v{32+4*i+j}')
        for j in range(8):
            if i == 0: a(f'v_mul_f32 v{B+j}, v{80+j}, v{17+i}')
            else: a(f'v_fmac_f32 v{B+j}, v{80+j}, v{17+i}')
        for j in range(8):
            a(f'v_mul_f32 v{80+j}, v{80+j}, v{10+i}')
        for j in range(4):
            a(f'v_cvt_pk_bf16_f32 v{32+4*i+j}, v{80+2*j}, v{81+2*j}')
        a(f'ds_write_b128 v5, {v(32+4*i,4)} offset:{4096*i}')
        for j in range(8):
            if i == 0: a(f'v_mov_b32 v{S+j}, v{80+j}')
            else: a(f'v_add_f32 v{S+j}, v{S+j}, v{80+j}')
    for m in ('row_ror:4', 'row_ror:8'):
        for j in range(16):
            a(f'v_add_f32_dpp v{S+j}, v{S+j}, v{S+j} {m} row_mask:0xf bank_mask:0xf')
    a(f'ds_write_b128 v6, {v(S,4)} offset:{SC}')
    a(f'ds_write_b128 v6, {v(S+4,4)} offset:{SC+16}')
    a(f'ds_write_b128 v6, {v(B,4)} offset:{SC+128}')
    a(f'ds_write_b128 v6, {v(B+4,4)} offset:{SC+144}')
    a('s_waitcnt lgkmcnt(0)')
    a('s_barrier')
    stamp(a)
    for i in range(7):
        a(f'ds_read_b64_tr_b16 {v(32+4*i,2)}, v7 offset:{1024*i}')
        a(f'ds_read_b64_tr_b16 {v(34+4*i,2)}, v7 offset:{1024*i+256}')
    for i in range(7):
        a(f's_add_u32 s7, s22, {i*1024}')
        a(f's_waitcnt lgkmcnt({12-2*i})')
        a(f'buffer_store_dwordx4 {v(32+4*i,4)}, v8, s[16:19], s7 offen')
    a('s_cmp_lg_u32 s24, 0')
    a('s_cbranch_scc1 k2_end')
    for i in range(16):
        a(f'ds_read_b32 v{80+i}, v9 offset:{SC+256*i}')
    a('v_mov_b32 v65, 0'); a('v_mov_b32 v66, 0'); a('v_mov_b32 v67, 0')
    a(f's_add_u32 s7, s22, {28*1024}')
    a('s_waitcnt lgkmcnt(0)')
    for st in (8, 4, 2, 1):
        for i in range(st):
            a(f'v_add_f32 v{80+i}, v{80+i}, v{80+st+i}')
    a('v_mov_b32 v81, v80')
    rb1(a, 81)
    a('v_sub_f32 v82, v80, v81')
    a('v_cvt_pk_bf16_f32 v64, v81, v82')
    a('buffer_store_dwordx4 v[64:67], v8, s[16:19], s7 offen')
    stamp_end(a, 1)
    a.label('k2_end')
    a('s_endpgm')
    a.end_kernel(nm, denorm=False)
    a.launch(nm, tot, 256, K2_LDS)

STAT = 114688
K3_LDS = STAT + 2048
def divmod7(a, sj, sq, sr):
    a(f's_mul_i32 s{sq}, s{sj}, 37')
    a(f's_lshr_b32 s{sq}, s{sq}, 8')
    a(f's_mul_i32 s{sr}, s{sq}, 7')
    a(f's_sub_u32 s{sr}, s{sj}, s{sr}')

def k3(a):
    nm = 'k3_kernel'
    CH, PRE = P['CH'], P['PRE']
    a.begin_kernel(nm)
    stamp_begin(a)
    a('s_cmp_ge_u32 s2, 224')
    a('s_cbranch_scc1 k3_end')
    a('s_load_dwordx2 s[4:5], s[0:1], 136')
    a('s_and_b32 s6, s2, 7')
    a('s_lshr_b32 s7, s2, 3')
    divmod7(a, 7, 8, 9)
    if P['g1map'] == '2x14':
        a('s_lshr_b32 s12, s8, 1'); a('s_lshl_b32 s10, s6, 1'); a('s_add_u32 s10, s10, s12')
        a('s_and_b32 s11, s8, 1'); a('s_mul_i32 s11, s11, 7'); a('s_add_u32 s11, s11, s9')
    else:
        a('s_lshr_b32 s10, s6, 1'); a('s_lshl_b32 s10, s10, 2'); a('s_add_u32 s10, s10, s8')
        a('s_and_b32 s11, s6, 1'); a('s_mul_i32 s11, s11, 7'); a('s_add_u32 s11, s11, s9')
    a('v_lshrrev_b32 v1, 6, v0')
    a('v_and_b32 v2, 63, v0')
    a('v_readfirstlane_b32 s20, v1')
    a('v_lshrrev_b32 v3, 4, v2')
    a('v_and_b32 v4, 15, v0')
    a('v_lshlrev_b32 v5, 2, v3')
    a('v_xor_b32 v4, v4, v5')
    a('v_lshlrev_b32 v4, 4, v4')
    a('v_lshl_add_u32 v4, v3, 12, v4')
    a('v_lshl_add_u32 v4, v1, 14, v4')
    a('v_lshlrev_b32 v5, 4, v2')
    a('s_lshl_b32 s21, s10, 8')
    a(f's_add_u32 s21, s21, {X1T}')
    a('s_lshl_b32 s22, s11, 2')
    a('s_add_u32 s22, s22, s20')
    a(f's_mul_i32 s23, s22, {2*29*1024}')
    a(f's_add_u32 s23, s23, {WP}')
    a(f's_add_u32 s24, s23, {29*1024}')
    a('s_lshl_b32 s25, s20, 10')
    a('s_waitcnt lgkmcnt(0)')
    srd(a, 16, 4, WSZ)
    nissued = [0]
    order = []
    def issue(ks):
        if ks < 28:
            a(f's_add_u32 m0, s25, {ks*4096}')
            a(f's_add_u32 s26, s21, {ks*65536}')
            a('buffer_load_dwordx4 v4, s[16:19], s26 offen lds')
            order.append(('D', ks))
        if ks % 4 == 0:
            a(f's_add_u32 s27, s23, {ks*1024}')
            a(f's_add_u32 s28, s24, {ks*1024}')
        a(f'buffer_load_dwordx4 {a_(8*ks,4)}, v5, s[16:19], s27 offen offset:{(ks%4)*1024}')
        order.append(('G', ks))
        a(f'buffer_load_dwordx4 {a_(8*ks+4,4)}, v5, s[16:19], s28 offen offset:{(ks%4)*1024}')
        order.append(('U', ks))
    def wait_through(item):
        idx = order.index(item)
        n = len(order) - 1 - idx
        assert n <= 63
        a(f's_waitcnt vmcnt({n})')
    for ks in range(PRE): issue(ks)
    a('v_bfe_u32 v6, v0, 5, 1')
    a('v_bfe_u32 v7, v0, 2, 2')
    a('v_lshl_add_u32 v12, v6, 3, v7')
    a('v_lshlrev_b32 v12, 8, v12')
    a('v_bfe_u32 v13, v0, 4, 1')
    a('v_lshl_add_u32 v12, v13, 5, v12')
    a('v_and_b32 v13, 3, v0')
    a('v_lshl_add_u32 v12, v13, 3, v12')
    a('v_xor_b32 v7, v7, v1')
    for jj in range(4):
        a(f'v_xor_b32 v13, {jj}, v7')
        a(f'v_lshl_add_u32 v{8+jj}, v13, 6, v12')
    if P.get('x_trlin'):
        for jj in range(4): a(f'v_lshlrev_b32 v{8+jj}, 3, v2')
    XB = 16
    EF = 48
    ACC = 128
    S1, S2 = 64, 66
    T = 68
    for i in range(16): a(f'v_mov_b32 v{EF+i}, 0')
    for i in range(4): a(f'v_mov_b32 v{S1+i}, 0')
    def trreads(ks):
        b = XB + (ks & 1)*16
        off = (ks % 16)*4096
        for jj in range(4):
            a(f'ds_read_b64_tr_b16 {v(b+4*jj,2)}, v{8+jj} offset:{off}')
            a(f'ds_read_b64_tr_b16 {v(b+4*jj+2,2)}, v{8+jj} offset:{off+1024}')
    def sync_for(ks):
        last = min(ks + CH - 1, 27)
        wait_through(('U', last))
        if not (P.get('x_nobar') and ks > 8): a('s_barrier')
    stamp(a)
    sync_for(0)
    stamp(a)
    trreads(0)
    for ks in range(28):
        if ks in (4, 8, 12, 16, 20, 24): stamp(a)
        if ks + PRE <= 28: issue(ks + PRE)
        if ks + 1 < 28:
            if (ks + 1) % CH == 0: sync_for(ks + 1)
            if ks + 1 == 16:
                for jj in range(4): a(f'v_add_u32 v{8+jj}, 0x10000, v{8+jj}')
            trreads(ks + 1)
        rem = 8 if ks + 1 < 28 else 0
        b = XB + (ks & 1)*16
        stats = []
        for dw in range(4):
            t0, t1 = T + 2*(dw & 1), T + 2*(dw & 1) + 1
            stats.append([f'v_lshlrev_b32 v{t0}, 16, v{b+dw}', f'v_and_b32 v{t1}, 0xffff0000, v{b+dw}', f'v_add_f32 v{S1}, v{S1}, v{t0}'])
            stats.append([f'v_add_f32 v{S1+1}, v{S1+1}, v{t1}', f'v_fmac_f32 v{S2}, v{t0}, v{t0}', f'v_fmac_f32 v{S2+1}, v{t1}, v{t1}'])
        for jj in range(4):
            a(f's_waitcnt lgkmcnt({rem + 6 - 2*jj})')
            c0 = '0' if ks == 0 else v(ACC+32*jj, 16)
            c1 = '0' if ks == 0 else v(ACC+32*jj+16, 16)
            a(f'v_mfma_f32_32x32x16_bf16 {v(ACC+32*jj,16)}, {a_(8*ks,4)}, {v(b+4*jj,4)}, {c0}')
            for x in stats[2*jj]:
                if not P.get('x_nostat'): a(x)
            a(f'v_mfma_f32_32x32x16_bf16 {v(ACC+32*jj+16,16)}, {a_(8*ks+4,4)}, {v(b+4*jj,4)}, {c1}')
            for x in stats[2*jj+1]:
                if not P.get('x_nostat'): a(x)
    stamp(a)
    a(f'v_add_f32 v{S1}, v{S1}, v{S1+1}')
    a(f'v_add_f32 v{S2}, v{S2}, v{S2+1}')
    a(f'v_mov_b32 v{S1+1}, v{S1}')
    a(f'v_mov_b32 v{S2+1}, v{S2}')
    a(f'v_permlane32_swap_b32 v{S1}, v{S1+1}')
    a(f'v_permlane32_swap_b32 v{S2}, v{S2+1}')
    a(f'v_add_f32 v{S1}, v{S1}, v{S1+1}')
    a(f'v_add_f32 v{S2}, v{S2}, v{S2+1}')
    a(f'v_mul_f32 v{S1}, {fhex(1.0/448)}, v{S1}')
    a(f'v_mul_f32 v{S2}, {fhex(1.0/448)}, v{S2}')
    a(f'v_fma_f32 v{S2}, -v{S1}, v{S1}, v{S2}')
    a(f'v_max_f32 v{S2}, 0, v{S2}')
    rb1(a, S2)
    a(f'v_add_f32 v{S2}, {fhex(1e-5)}, v{S2}')
    rb1(a, S2)
    a(f'v_sqrt_f32 v{S2}, v{S2}')
    a(f'v_cvt_pk_bf16_f32 v{T}, -v{S1}, -v{S1}')
    a(f'v_cvt_pk_bf16_f32 v{T+1}, v{S2}, v{S2}')
    a(f'v_and_b32 v{S2}, 0xffff0000, v{T+1}')
    a(f'v_rcp_f32 v{S2}, v{S2}')
    a('v_cmp_lt_u32 vcc, 31, v2')
    a(f'v_mul_f32 v{T+3}, v{S2}, v{S2}')
    a(f'v_cndmask_b32 v{T+2}, v{T}, v{T+1}, vcc')
    a('v_lshlrev_b32 v12, 3, v0')
    a(f'v_add_u32 v12, {STAT}, v12')
    a(f'ds_write_b64 v12, {v(T+2,2)}')
    a('s_waitcnt lgkmcnt(0)')
    a('s_barrier')
    stamp(a)
    R2 = 72
    for jj in range(4):
        a(f'v_xor_b32 v13, {jj*512}, v12')
        a(f'ds_read_b32 v{EF+4*jj}, v13')
        a(f'ds_read_b32 v{R2+2*jj}, v13 offset:4')
    a('s_lshl_b32 s26, s10, 2')
    for jj in range(4):
        a(f's_xor_b32 s27, s20, {jj}')
        a('s_add_u32 s27, s27, s26')
        a('s_mul_i32 s27, s27, 112')
        a('s_lshl_b32 s28, s22, 1')
        a('s_add_u32 s27, s27, s28')
        a('s_lshl_b32 s27, s27, 10')
        a(f's_add_u32 s{30+jj}, s27, {HID}')
    wait_through(('U', 28))
    for jj in range(4):
        a(f's_waitcnt lgkmcnt({6-2*jj})')
        a(f'v_mfma_f32_32x32x16_bf16 {v(ACC+32*jj,16)}, {a_(8*28,4)}, {v(EF+4*jj,4)}, {v(ACC+32*jj,16)}')
        a(f'v_mfma_f32_32x32x16_bf16 {v(ACC+32*jj+16,16)}, {a_(8*28+4,4)}, {v(EF+4*jj,4)}, {v(ACC+32*jj+16,16)}')
    stamp(a)
    for jj in range(4):
        g, u = ACC+32*jj, ACC+32*jj+16
        for i in range(16): a(f'v_max_f32 v{g+i}, 0, v{g+i}')
        for i in range(0, 16, 2):
            a(f'v_pk_mul_f32 {v(u+i,2)}, {v(u+i,2)}, {v(R2+2*jj,2)} op_sel_hi:[1,0]')
        for i in range(0, 16, 2):
            a(f'v_pk_mul_f32 {v(g+i,2)}, {v(g+i,2)}, {v(u+i,2)}')
        ob = XB + 8*jj
        for i in range(8):
            a(f'v_cvt_pk_bf16_f32 v{ob+i}, v{g+2*i}, v{g+2*i+1}')
        a(f'buffer_store_dwordx4 {v(ob,4)}, v5, s[16:19], s{30+jj} offen')
        a(f'buffer_store_dwordx4 {v(ob+4,4)}, v5, s[16:19], s{30+jj} offen offset:1024')
    stamp_end(a, 2)
    a.label('k3_end')
    a('s_endpgm')
    a.end_kernel(nm, accum=256, denorm=False)
    a.launch(nm, 224, 256, K3_LDS)

K4_LDS = 49152
def k4(a):
    nm = 'k4_kernel'
    RD = P['RD']
    a.begin_kernel(nm)
    stamp_begin(a)
    a('s_cmp_ge_u32 s2, 224')
    a('s_cbranch_scc1 k4_end')
    a('s_load_dwordx2 s[4:5], s[0:1], 136')
    a('s_load_dwordx2 s[36:37], s[0:1], 120')
    a('s_and_b32 s6, s2, 7')
    a('s_lshr_b32 s7, s2, 3')
    divmod7(a, 7, 8, 9)
    a('s_lshl_b32 s10, s6, 2'); a('s_add_u32 s10, s10, s8')
    a('v_lshrrev_b32 v1, 6, v0')
    a('v_and_b32 v2, 63, v0')
    a('v_readfirstlane_b32 s20, v1')
    a('v_mul_u32_u24 v3, 28672, v1')
    a('v_lshl_add_u32 v3, v2, 4, v3')
    a('s_and_b32 s21, s20, 1')
    a('s_lshr_b32 s22, s20, 1')
    a('s_lshl_b32 s23, s10, 1')
    a('s_lshl_b32 s24, s9, 1')
    a('s_add_u32 s25, s23, s21')
    a('s_add_u32 s26, s24, s22')
    a('s_xor_b32 s27, s25, 1')
    a('s_xor_b32 s28, s26, 1')
    a(f's_mul_i32 s30, s25, {112*1024}'); a(f's_add_u32 s30, s30, {HID}')
    a(f's_mul_i32 s31, s27, {112*1024}'); a(f's_add_u32 s31, s31, {HID}')
    a(f's_mul_i32 s32, s26, {112*1024}'); a(f's_add_u32 s32, s32, {WD}')
    a(f's_mul_i32 s33, s28, {112*1024}'); a(f's_add_u32 s33, s33, {WD}')
    a('s_waitcnt lgkmcnt(0)')
    srd(a, 16, 4, WSZ)
    srd(a, 12, 36, 2048*448*2)
    order = []
    def issue(i):
        if i > 0 and i % 4 == 0:
            for r in (30, 31, 32, 33): a(f's_add_u32 s{r}, s{r}, 4096')
        b = (i % RD)*16
        for n, r in enumerate((32, 30, 31, 33)):
            a(f'buffer_load_dwordx4 {a_(b+4*n,4)}, v3, s[16:19], s{r} offen offset:{(i%4)*1024}')
            order.append((i, n))
    def wait_through(item):
        n = len(order) - 1 - order.index(item)
        assert n <= 63
        a(f's_waitcnt vmcnt({n})')
    for i in range(RD): issue(i)
    a('v_bfe_u32 v4, v0, 5, 1')
    a('v_and_b32 v5, 31, v0')
    a('v_lshlrev_b32 v6, 14, v4')
    a('v_lshl_add_u32 v6, v5, 1, v6')
    a('v_lshlrev_b32 v7, 4, v4')
    a('s_lshl_b32 s34, s25, 5')
    a('v_add_u32 v8, s34, v5')
    a('v_mul_u32_u24 v8, 896, v8')
    a('v_lshl_add_u32 v8, v4, 3, v8')
    a('s_lshl_b32 s34, s26, 6')
    a('v_add_u32 v8, s34, v8')
    a('s_lshl_b32 s34, s26, 17')
    a('s_lshl_b32 s35, s25, 6')
    a('s_add_u32 s34, s34, s35')
    a(f's_add_u32 s34, s34, {X1T}')
    a('s_lshl_b32 s35, s26, 7')
    a(f's_add_u32 s35, s35, {MOD + 5*448*4}')
    a('v_lshlrev_b32 v9, 4, v2')
    for sl in range(1, 4):
        a(f'v_xor_b32 v13, {sl}, v1')
        a('v_mul_u32_u24 v13, 12288, v13')
        a(f'v_add_u32 v{9+sl}, v13, v9')
    a('v_mul_u32_u24 v13, 12288, v1')
    a('v_add_u32 v9, v13, v9')
    ACC = 64
    XR = 16
    GB = 32
    epi = []
    for q in range(4):
        for r in range(4):
            epi.append((f's_add_u32 s38, s34, {(8*q+r)*4096}', f'buffer_load_ushort v{XR+4*q+r}, v6, s[16:19], s38 offen'))
    for q in range(4):
        epi.append((None, f'buffer_load_dwordx4 {v(GB+4*q,4)}, v7, s[16:19], s35 offen offset:{32*q}'))
    for i in range(28):
        if i in (0, 1, 4, 8, 12, 16, 20, 24): stamp(a)
        b = (i % RD)*16
        W0, H0, H1, W1 = a_(b,4), a_(b+4,4), a_(b+8,4), a_(b+12,4)
        c = lambda n: '0' if i == 0 else v(ACC+16*n, 16)
        wait_through((i, 1))
        a(f'v_mfma_f32_32x32x16_bf16 {v(ACC,16)}, {W0}, {H0}, {c(0)}')
        wait_through((i, 2))
        a(f'v_mfma_f32_32x32x16_bf16 {v(ACC+16,16)}, {W0}, {H1}, {c(1)}')
        wait_through((i, 3))
        a(f'v_mfma_f32_32x32x16_bf16 {v(ACC+32,16)}, {W1}, {H0}, {c(2)}')
        a(f'v_mfma_f32_32x32x16_bf16 {v(ACC+48,16)}, {W1}, {H1}, {c(3)}')
        if i + RD < 28: issue(i + RD)
        elif epi:
            for _ in range(4):
                if epi:
                    x, y = epi.pop(0)
                    if x: a(x)
                    a(y); order.append(('e', len(order)))
    assert not epi
    stamp(a)
    for sl in range(1, 4):
        for q in range(4):
            a(f'ds_write_b128 v{9+sl}, {v(ACC+16*sl+4*q,4)} offset:{(sl-1)*4096 + q*1024}')
    a('s_waitcnt lgkmcnt(0)')
    a('s_barrier')
    stamp(a)
    for n in range(12):
        a(f'ds_read_b128 {v(ACC+16+4*n,4)}, v9 offset:{n*1024}')
    a('s_waitcnt vmcnt(0)')
    for i in range(16): a(f'v_lshlrev_b32 v{XR+i}, 16, v{XR+i}')
    for sl in range(3):
        a(f's_waitcnt lgkmcnt({8-4*sl})')
        for i in range(16):
            a(f'v_add_f32 v{ACC+i}, v{ACC+i}, v{ACC+16+16*sl+i}')
    for i in range(0, 16, 2): rb2(a, ACC+i, ACC+i+1, 48 + ((i >> 1) & 3))
    for i in range(16): a(f'v_mul_f32 v{ACC+i}, v{ACC+i}, v{GB+i}')
    for i in range(0, 16, 2): rb2(a, ACC+i, ACC+i+1, 48 + ((i >> 1) & 3))
    for i in range(16): a(f'v_add_f32 v{ACC+i}, v{ACC+i}, v{XR+i}')
    for i in range(8): a(f'v_cvt_pk_bf16_f32 v{52+i}, v{ACC+2*i}, v{ACC+2*i+1}')
    for q in range(4):
        a(f'buffer_store_dwordx2 {v(52+2*q,2)}, v8, s[12:15], 0 offen offset:{16*q}')
    stamp_end(a, 3)
    a.label('k4_end')
    a('s_endpgm')
    a.end_kernel(nm, denorm=False)
    a.launch(nm, 224, 256, K4_LDS)

HEADER = open('adaLN_cond__ssm_conv_s4__glu_gated_reglu__prompt.s.ref').read().split('; Override launch')[0]
def build(fn, **kw):
    P.update(kw)
    a = Asm()
    for ch in str(P.get('ks', '1234')):
        {'1': k1, '2': k2, '3': k3, '4': k4}[ch](a)
    a.label('code_end')
    open(fn, 'w').write(a.text(HEADER))
    print('nops inserted', a.nops)

if __name__ == '__main__':
    out = sys.argv[1] if len(sys.argv) > 1 else 'v1.s'
    kw = {}
    for x in sys.argv[2:]:
        k, val = x.split('=')
        kw[k] = int(val) if val.lstrip('-').isdigit() else val
    build(out, **kw)
```

```python
import sys, math
from asmlib import Asm, v, a_, s, fhex

L, D, NM, F = 2048, 448, 256, 1792
ZX  = 0x0000000
KR  = 0x0380000
X1T = 0x0540000
MOD = 0x0700000
WD  = 0x0710000
WP  = 0x08A0000
HID = 0x0C00000
WSZ = 0x1300000
LOG2E = 1.4426950408889634
P = dict(CH=2, g1map='2x14', RD=12, PRE=20)

def srd(a, sd, sb, nbytes):
    a(f's_mov_b32 s{sd}, s{sb}')
    a(f's_mov_b32 s{sd+1}, s{sb+1}')
    a(f's_mov_b32 s{sd+2}, {hex(nbytes)}')
    a(f's_mov_b32 s{sd+3}, 0x20000')

def cmul(a, d, x, e, t):
    a(f'v_pk_mul_f32 {v(t,2)}, {v(x,2)}, {v(e,2)} op_sel:[0,0] op_sel_hi:[1,0]')
    a(f'v_pk_fma_f32 {v(d,2)}, {v(x,2)}, {v(e,2)}, {v(t,2)} op_sel:[1,1,0] op_sel_hi:[0,1,1] neg_lo:[1,0,0]')

def rb1(a, r):
    a(f'v_cvt_pk_bf16_f32 v{r}, v{r}, v{r}')
    a(f'v_and_b32 v{r}, 0xffff0000, v{r}')

def rb2(a, r0, r1, t):
    a(f'v_cvt_pk_bf16_f32 v{t}, v{r0}, v{r1}')
    a(f'v_lshlrev_b32 v{r0}, 16, v{t}')
    a(f'v_and_b32 v{r1}, 0xffff0000, v{t}')

STAMPS = 0x1400000
class St:
    n = 0
def stamp(a):
    if not P.get('stamp'): return
    a(f's_{"memtime" if P.get("cyc") else "memrealtime"} s[{60+2*St.n}:{61+2*St.n}]')
    St.n += 1
    assert St.n <= 14
def stamp_begin(a):
    St.n = 0
    if P.get('dstamp'):
        a('s_memrealtime s[60:61]')
        a('s_load_dwordx2 s[62:63], s[0:1], 128')
    if not P.get('stamp'): return
    a('s_memtime s[96:97]')
    stamp(a)
def stamp_end(a, kidx):
    if P.get('dstamp'):
        lab = f'dst_{len(a.lines)}'
        a('s_waitcnt vmcnt(0) lgkmcnt(0)')
        a('s_memrealtime s[64:65]')
        a('s_and_b32 s66, s2, 15')
        a('s_cmp_lg_u32 s66, 5')
        a(f's_cbranch_scc1 {lab}')
        a(f's_add_u32 s62, s62, {512*(3-kidx)}')
        a('s_addc_u32 s63, s63, 0')
        a('v_cmp_eq_u32 vcc, 0, v0')
        a('s_and_saveexec_b64 s[66:67], vcc')
        a(f's_cbranch_execz {lab}')
        a('v_mov_b32 v1, 0')
        a('s_waitcnt lgkmcnt(0)')
        a('v_mov_b32 v2, s64')
        a(f'global_atomic_umax v1, v2, s[62:63] offset:{16*kidx+4}')
        a('s_not_b32 s60, s60')
        a('v_mov_b32 v2, s60')
        a(f'global_atomic_umax v1, v2, s[62:63] offset:{16*kidx}')
        a('s_not_b32 s64, s64')
        a('v_mov_b32 v2, s64')
        a(f'global_atomic_umax v1, v2, s[62:63] offset:{16*kidx+8}')
        a.label(lab)
    if P.get('stamp'):
        a('s_waitcnt vmcnt(0) lgkmcnt(0)')
        stamp(a)
        a('s_memtime s[98:99]')
        a('v_lshrrev_b32 v1, 6, v0')
        a('s_lshl_b32 s58, s2, 8')
        a(f's_add_u32 s58, s58, {STAMPS + kidx*1024*256}')
        a('v_lshl_add_u32 v1, v1, 6, s58')
        a('s_waitcnt lgkmcnt(0)')
        a('s_sub_u32 s98, s98, s96')
        for k in range(St.n):
            a(f'v_mov_b32 v2, s{60+2*k}')
            a(f'global_store_dword v1, v2, s[4:5] offset:{4*k}')
        a('v_mov_b32 v2, s98')
        a(f'global_store_dword v1, v2, s[4:5] offset:60')
        a(f'v_mov_b32 v2, {St.n}')
        a(f'global_store_dword v1, v2, s[4:5] offset:56')
    a('s_endpgm')

N_KG, N_LN, N_MOD, N_WD = 448, 128, 84, 56
K1_LDS = 39040
def k1(a):
    nm = 'k1_kernel'
    a.begin_kernel(nm)
    stamp_begin(a)
    tot = N_KG + N_LN + N_MOD + N_WD
    NPF = P.get('npf', 0)
    if NPF:
        a(f's_cmp_ge_u32 s2, {NPF}')
        a('s_cbranch_scc1 k1_main')
        parts = NPF // 8
        a('s_getpc_b64 s[8:9]')
        a.label('k1_pf_pc')
        a('s_sub_u32 s8, s8, k1_pf_pc-k1_kernel')
        a('s_subb_u32 s9, s9, 0')
        a('s_lshr_b32 s3, s2, 3')
        a('s_lshl_b32 s3, s3, 12')
        a('v_lshl_add_u32 v1, v0, 4, s3')
        a('s_mov_b32 s6, code_end-k1_kernel-16')
        nld = P.get('pfn', 8)
        for i in range(nld):
            a(f'v_min_u32 v2, s6, v1')
            a(f'global_load_dwordx4 {v(4+4*i,4)}, v2, s[8:9]')
            a(f'v_add_u32 v1, {4096*parts}, v1')
        if P.get('zero'):
            a('s_load_dwordx2 s[4:5], s[0:1], 136')
            for i in range(4): a(f'v_mov_b32 v{100+i}, 0')
            a('s_lshl_b32 s3, s2, 12')
            a(f's_add_u32 s3, s3, {0x1310000}')
            a('v_lshl_add_u32 v3, v0, 4, s3')
            a('s_waitcnt lgkmcnt(0)')
            for i in range(P['zero']):
                a('global_store_dwordx4 v3, v[100:103], s[4:5]')
                a('v_add_u32 v3, 0x10000, v3')
        a('s_waitcnt vmcnt(0)')
        a('s_endpgm')
        a.label('k1_main'); a.hist = []
        a(f's_sub_u32 s2, s2, {NPF}')
    a(f's_cmp_ge_u32 s2, {tot}')
    a('s_cbranch_scc1 k1_end')
    a('s_load_dwordx2 s[4:5], s[0:1], 136')
    a(f's_cmp_ge_u32 s2, {N_KG + N_LN + N_MOD}')
    a('s_cbranch_scc1 k1_wd')
    a(f's_cmp_ge_u32 s2, {N_KG + N_LN}')
    a('s_cbranch_scc1 k1_mod')
    a(f's_cmp_ge_u32 s2, {N_KG}')
    a('s_cbranch_scc1 k1_ln')
    FT = 34816
    a('s_load_dwordx16 s[8:23], s[0:1], 8')
    a('s_lshl_b32 s3, s2, 9')
    a('v_lshl_add_u32 v1, v0, 1, s3')
    a('s_lshl_b32 s6, s2, 1')
    a('v_mov_b32 v9, s6')
    a('s_waitcnt lgkmcnt(0)')
    for i in range(6):
        a(f'global_load_ushort v{2+i}, v1, s[{8+2*i}:{9+2*i}]')
    a('global_load_ushort v8, v9, s[20:21]')
    a('v_lshlrev_b32 v24, 3, v0')
    for e in range(0, 8, 2):
        a(f'v_sub_u32 v25, {2047-e}, v24')
        a(f'v_sub_u32 v26, {2047-e-1}, v24')
        a('v_cvt_f32_u32 v25, v25')
        a('v_cvt_f32_u32 v26, v26')
        rb2(a, 25, 26, 27)
        a('v_cvt_u32_f32 v25, v25')
        a('v_cvt_u32_f32 v26, v26')
        for (u, dst) in ((25, 10+e), (26, 11+e)):
            a(f'v_and_b32 v28, 0xf00, v{u}')
            a(f'v_and_b32 v29, 7, v{u}')
            a(f'v_lshrrev_b32 v30, 2, v{u}')
            a('v_and_b32 v30, 0x3e, v30')
            a('v_lshl_or_b32 v28, v28, 1, v30')
            a(f'v_lshl_or_b32 v{dst}, v29, 6, v28')
    a('v_lshrrev_b32 v24, 6, v0')
    a('v_mul_u32_u24 v24, 8704, v24')
    a('v_and_b32 v25, 63, v0')
    a('v_lshl_add_u32 v20, v25, 2, v24')
    a('v_and_b32 v26, 31, v0')
    a('v_bfe_u32 v27, v0, 5, 1')
    a('v_mul_u32_u24 v28, 272, v26')
    a('v_lshl_add_u32 v28, v27, 4, v28')
    a('v_add_u32 v21, v28, v24')
    a('v_mul_u32_u24 v28, 144, v26')
    a('v_lshl_add_u32 v28, v27, 4, v28')
    a('v_add_u32 v22, v28, v24')
    a('v_lshrrev_b32 v26, 3, v0')
    a('v_and_b32 v27, 7, v0')
    a('v_mul_u32_u24 v28, 144, v26')
    a('v_lshl_add_u32 v18, v27, 4, v28')
    a('v_lshlrev_b32 v28, 1, v26'); a('v_subrev_u32 v28, 8, v28')
    a('v_lshlrev_b32 v29, 2, v26'); a('v_subrev_u32 v29, 32, v29')
    a('v_lshlrev_b32 v30, 3, v26'); a('v_subrev_u32 v30, 96, v30')
    a('v_max3_i32 v28, v26, v28, v29')
    a('v_max_i32 v28, v28, v30')
    a('v_min_i32 v28, 65, v28')
    a('v_lshlrev_b32 v28, 6, v28')
    a('v_lshl_add_u32 v19, v27, 3, v28')
    a('s_lshl_b32 s3, s2, 12')
    a(f's_add_u32 s3, s3, {KR}')
    a('v_lshl_add_u32 v23, v0, 4, s3')
    stamp(a)
    a('s_waitcnt vmcnt(0)')
    stamp(a)
    for i in range(7):
        a(f'v_lshlrev_b32 v{2+i}, 16, v{2+i}')
    Lhi = LOG2E
    import struct
    Lf = struct.unpack('<f', struct.pack('<f', LOG2E))[0]
    Llo = LOG2E - Lf
    a(f's_mov_b32 s24, {fhex(Lf)}')
    a(f's_mov_b32 s25, {fhex(Llo)}')
    a(f's_mov_b32 s26, {fhex(math.log(2.0))}')
    a('v_mul_f32 v24, s24, v8')
    a('v_fma_f32 v25, v8, s24, -v24')
    a('v_fma_f32 v25, v8, s25, v25')
    a('v_exp_f32 v24, v24')
    a('v_mul_f32 v25, s26, v25')
    a('v_fma_f32 v8, v24, v25, v24')
    rb1(a, 8)
    a('v_mul_f32 v2, v8, v2')
    a('v_mul_f32 v3, v8, v3')
    a('v_mul_f32 v4, v8, v4')
    a('v_mul_f32 v5, v8, v5')
    a('v_mul_f32 v2, s24, v2')
    a('v_mul_f32 v3, 0.15915494309189532, v3')
    def direct(dst, mult, conj):
        if mult == 1:
            a('v_exp_f32 v24, v2'); a('v_fract_f32 v25, v3')
        else:
            a(f'v_mul_f32 v24, {fhex(float(mult))}, v2')
            a(f'v_mul_f32 v25, {fhex(float(mult))}, v3')
            a('v_exp_f32 v24, v24'); a('v_fract_f32 v25, v25')
        a('v_cos_f32 v26, v25')
        a('v_sin_f32 v27, v25')
        a(f'v_mul_f32 v{dst}, v24, v26')
        if conj: a(f'v_mul_f32 v{dst+1}, -v24, v27')
        else: a(f'v_mul_f32 v{dst+1}, v24, v27')
    direct(34, 8, False)
    E1, E256 = 58, 60
    direct(E1, 1, True)
    direct(E256, 256, True)
    a('v_mov_b32 v32, 1.0'); a('v_mov_b32 v33, 0')
    cmul(a, 36, 34, 34, 50)
    cmul(a, 38, 36, 34, 52)
    cmul(a, 48, 36, 36, 54)
    cur, nxt = 32, 40
    for blk in range(8):
        for c in range(4):
            a(f'v_cvt_pk_bf16_f32 v{28+c}, v{cur+2*c}, v{cur+2*c+1}')
        if blk < 7:
            for c in range(4):
                cmul(a, nxt+2*c, cur+2*c, 48, 50+2*c)
        for c in range(4):
            a(f'ds_write_b32 v20, v{28+c} offset:{(blk*4+c)*272}')
        cur, nxt = nxt, cur
    stamp(a)
    for st in range(8):
        a(f'ds_read_b128 {v(64+4*st,4)}, v21 offset:{32*st}')
    X = lambda i: 96 + 0
    xr = {}
    pool = list(range(32, 48, 2)) + [96, 98, 100, 102, 104, 106]
    def newx(i):
        xr[i] = pool.pop(0); return xr[i]
    def freex(i): pool.append(xr.pop(i))
    def wr(i):
        t = 28 + (i & 3)
        a(f'v_cvt_pk_bf16_f32 v{t}, v{xr[i]}, v{xr[i]+1}')
        a(f'ds_write_b32 v20, v{t} offset:{i*272}')
    x0 = newx(0)
    a(f'v_mul_f32 v{x0}, v6, v4')
    a(f'v_mul_f32 v{x0+1}, -v6, v5')
    a(f'v_fma_f32 v{x0}, -v7, v5, v{x0}')
    a(f'v_fma_f32 v{x0+1}, -v7, v4, v{x0+1}')
    E2 = 62
    cmul(a, E2, E1, E1, 50)
    cmul(a, newx(1), xr[0], E1, 52)
    tt = [50, 52, 54, 56]
    k = 0
    for i in range(2, 8):
        cmul(a, newx(i), xr[i-2], E2, tt[k & 3]); k += 1
    for i in range(8): wr(i)
    for i in (1, 3, 5, 7): freex(i)
    for j, src in enumerate((0, 2, 4, 6)):
        cmul(a, newx(8+j), xr[src], E256, tt[j])
    for i in (0, 2, 4, 6): freex(i)
    cmul(a, newx(12), xr[8], E256, 50)
    cmul(a, newx(13), xr[10], E256, 52)
    for i in range(8, 12): wr(i)
    cmul(a, newx(14), xr[12], E256, 54)
    cmul(a, newx(15), xr[13], E256, 56)
    for i in range(8, 12): freex(i)
    wr(12); wr(13)
    cmul(a, newx(16), xr[14], E256, 50)
    wr(14); wr(15)
    for i in range(17, 21):
        cmul(a, newx(i), xr[i-1], E256, tt[i & 3])
        wr(i-1)
    wr(20)
    stamp(a)
    for st in range(8):
        a(f'ds_read_b128 {v(32+4*st,4)}, v21 offset:{32*st}')
    ACC = 96
    for st in range(8):
        a(f's_waitcnt lgkmcnt({7-st})')
        a(f'v_mfma_f32_32x32x16_bf16 {v(ACC,16)}, {v(64+4*st,4)}, {v(32+4*st,4)}, {"0" if st == 0 else v(ACC,16)}')
    for q in range(4):
        a(f'ds_write_b128 v22, {v(ACC+4*q,4)} offset:{32*q}')
    a('s_waitcnt lgkmcnt(0)')
    a('s_barrier')
    stamp(a)
    for w in range(4):
        a(f'ds_read_b128 {v(32+4*w,4)}, v18 offset:{8704*w}')
    a('s_waitcnt lgkmcnt(2)')
    for e in range(4): a(f'v_add_f32 v{32+e}, v{32+e}, v{36+e}')
    a('s_waitcnt lgkmcnt(0)')
    for e in range(4): a(f'v_add_f32 v{40+e}, v{40+e}, v{44+e}')
    for e in range(4): a(f'v_add_f32 v{32+e}, v{32+e}, v{40+e}')
    a('v_cvt_pk_bf16_f32 v36, v32, v33')
    a('v_cvt_pk_bf16_f32 v37, v34, v35')
    a(f'ds_write_b64 v19, v[36:37] offset:{FT}')
    a('s_waitcnt lgkmcnt(0)')
    a('s_barrier')
    stamp(a)
    for e in range(8):
        a(f'ds_read_u16 v{40+e}, v{10+e} offset:{FT}')
    a('s_waitcnt lgkmcnt(0)')
    for e in range(4):
        a(f'v_lshl_or_b32 v{32+e}, v{41+2*e}, 16, v{40+2*e}')
    a('global_store_dwordx4 v23, v[32:35], s[4:5]')
    stamp_end(a, 0)

    a.label('k1_ln'); a.hist = []
    St.n = 1
    a('s_load_dwordx2 s[8:9], s[0:1], 0')
    a(f's_sub_u32 s3, s2, {N_KG}')
    a('s_lshl_b32 s3, s3, 4')
    a('v_lshrrev_b32 v1, 4, v0')
    a('v_and_b32 v2, 15, v0')
    a('v_add_u32 v3, s3, v1')
    a('v_mul_u32_u24 v3, 896, v3')
    a('v_lshl_add_u32 v3, v2, 3, v3')
    a('s_waitcnt lgkmcnt(0)')
    for j in range(7):
        a(f'global_load_dwordx2 {v(10+2*j,2)}, v3, s[8:9] offset:{128*j}')
    a('v_mul_u32_u24 v4, 272, v2')
    a('v_lshl_add_u32 v4, v1, 2, v4')
    a('v_lshrrev_b32 v5, 2, v0')
    a('v_and_b32 v6, 3, v0')
    a('v_add_u32 v7, v1, v6')
    a('v_lshlrev_b32 v7, 4, v7')
    a('v_lshl_add_u32 v7, v5, 6, v7')
    a('s_lshl_b32 s6, s3, 2')
    a('v_lshlrev_b32 v8, 13, v5')
    a('v_lshl_add_u32 v8, v6, 4, v8')
    a('v_add_u32 v8, s6, v8')
    srd(a, 12, 4, WSZ)
    XV = 32
    for j in range(7):
        a(f's_waitcnt vmcnt({6-j})')
        for e2 in range(2):
            a(f'v_lshlrev_b32 v{XV+4*j+2*e2}, 16, v{10+2*j+e2}')
            a(f'v_and_b32 v{XV+4*j+2*e2+1}, 0xffff0000, v{10+2*j+e2}')
    for c in range(4):
        a(f'v_add_f32 v{24+c}, v{XV+c}, v{XV+4+c}')
    for j in range(2, 7):
        for c in range(4):
            a(f'v_add_f32 v{24+c}, v{24+c}, v{XV+4*j+c}')
    a('v_add_f32 v24, v24, v25'); a('v_add_f32 v26, v26, v27'); a('v_add_f32 v24, v24, v26')
    def allred16(r):
        for m in ('quad_perm:[1,0,3,2]', 'quad_perm:[2,3,0,1]', 'row_half_mirror', 'row_mirror'):
            a(f'v_add_f32_dpp v{r}, v{r}, v{r} {m} row_mask:0xf bank_mask:0xf')
    allred16(24)
    a(f'v_mul_f32 v24, {fhex(1.0/448)}, v24')
    for i in range(28):
        a(f'v_sub_f32 v{64+i}, v{XV+i}, v24')
    for c in range(4):
        a(f'v_mul_f32 v{26+c}, v{64+c}, v{64+c}')
    for i in range(4, 28):
        a(f'v_fmac_f32 v{26+(i&3)}, v{64+i}, v{64+i}')
    a('v_add_f32 v26, v26, v27'); a('v_add_f32 v28, v28, v29'); a('v_add_f32 v26, v26, v28')
    allred16(26)
    a(f'v_mul_f32 v26, {fhex(1.0/448)}, v26')
    rb2(a, 24, 26, 27)
    a(f'v_add_f32 v26, {fhex(1e-5)}, v26')
    rb1(a, 26)
    a('v_sqrt_f32 v26, v26')
    rb1(a, 26)
    a('v_rcp_f32 v26, v26')
    for i in range(0, 28, 2):
        a(f'v_sub_f32 v{64+i}, v{XV+i}, v24')
        a(f'v_sub_f32 v{65+i}, v{XV+i+1}, v24')
    for i in range(0, 28, 2):
        rb2(a, 64+i, 65+i, 28 + ((i >> 1) & 3))
    for i in range(28):
        a(f'v_mul_f32 v{64+i}, v{64+i}, v26')
    for i in range(28):
        a(f'v_cvt_pk_bf16_f32 v{64+i}, v{64+i}, v{XV+i}')
        a(f'ds_write_b32 v4, v{64+i} offset:{(i>>2)*4352 + (i&3)*64}')
    a('s_waitcnt lgkmcnt(0)')
    a('s_barrier')
    stamp(a)
    for i in range(7):
        a(f'ds_read_b128 {v(32+4*i,4)}, v7 offset:{4352*i}')
    for i in range(7):
        a(f's_mov_b32 s7, {hex(ZX + 0x80000*i)}')
        a(f's_waitcnt lgkmcnt({6-i})')
        a(f'buffer_store_dwordx4 {v(32+4*i,4)}, v8, s[12:15], s7 offen')
    stamp_end(a, 0)

    a.label('k1_mod'); a.hist = []
    St.n = 1
    a('s_load_dwordx4 s[8:11], s[0:1], 104')
    a(f's_sub_u32 s3, s2, {N_KG + N_LN}')
    a('s_lshl_b32 s6, s3, 6')
    a('v_and_b32 v1, 3, v0')
    a('v_lshrrev_b32 v2, 2, v0')
    a('v_mul_u32_u24 v3, 5376, v2')
    a('v_lshl_add_u32 v3, v1, 4, v3')
    a('v_add_u32 v3, s6, v3')
    a('v_lshlrev_b32 v4, 1, v2')
    a('s_waitcnt lgkmcnt(0)')
    srd(a, 12, 10, 448*2688*2)
    for i in range(7):
        a(f'global_load_ushort v{10+i}, v4, s[8:9] offset:{128*i}')
    for i in range(7):
        a(f's_mov_b32 s7, {344064*i}')
        a(f'buffer_load_dwordx4 {v(32+4*i,4)}, v3, s[12:15], s7 offen')
    a('v_lshrrev_b32 v5, 4, v0')
    a('v_lshlrev_b32 v5, 7, v5')
    a('v_lshl_add_u32 v5, v1, 5, v5')
    a('v_and_b32 v6, 31, v0')
    a('v_lshlrev_b32 v6, 2, v6')
    a('s_waitcnt vmcnt(7)')
    for i in range(7):
        a(f'v_lshlrev_b32 v{10+i}, 16, v{10+i}')
    for i in range(7):
        a(f'v_mul_f32 v{20+i}, {fhex(-LOG2E)}, v{10+i}')
    for i in range(7): a(f'v_exp_f32 v{20+i}, v{20+i}')
    for i in range(7): a(f'v_add_f32 v{20+i}, 1.0, v{20+i}')
    for i in range(7): a(f'v_rcp_f32 v{20+i}, v{20+i}')
    for i in range(7): a(f'v_mul_f32 v{10+i}, v{10+i}, v{20+i}')
    for i in range(7): rb1(a, 10+i)
    ACC = 64
    for i in range(7):
        a(f's_waitcnt vmcnt({6-i})')
        for j in range(4):
            a(f'v_lshlrev_b32 v{20+2*j}, 16, v{32+4*i+j}')
            a(f'v_and_b32 v{21+2*j}, 0xffff0000, v{32+4*i+j}')
        for j in range(8):
            if i == 0: a(f'v_mul_f32 v{ACC+j}, v{20+j}, v{10+i}')
            else: a(f'v_fmac_f32 v{ACC+j}, v{20+j}, v{10+i}')
    for m in ('row_ror:4', 'row_ror:8'):
        for j in range(8):
            a(f'v_add_f32_dpp v{ACC+j}, v{ACC+j}, v{ACC+j} {m} row_mask:0xf bank_mask:0xf')
    a(f'ds_write_b128 v5, {v(ACC,4)}')
    a(f'ds_write_b128 v5, {v(ACC+4,4)} offset:16')
    a('s_waitcnt lgkmcnt(0)')
    a('s_barrier')
    stamp(a)
    a('v_cmp_gt_u32 vcc, 32, v0')
    a('s_and_saveexec_b64 s[16:17], vcc')
    a('s_cbranch_execz k1_end')
    for i in range(16):
        a(f'ds_read_b32 v{32+i}, v6 offset:{128*i}')
    a('s_lshl_b32 s6, s3, 7')
    a(f's_add_u32 s6, s6, {MOD}')
    a('v_add_u32 v7, s6, v6')
    a('s_waitcnt lgkmcnt(0)')
    for st in (8, 4, 2, 1):
        for i in range(st):
            a(f'v_add_f32 v{32+i}, v{32+i}, v{32+st+i}')
    rb1(a, 32)
    a('global_store_dword v7, v32, s[4:5]')
    stamp_end(a, 0)

    a.label('k1_wd'); a.hist = []
    St.n = 1
    a('s_load_dwordx2 s[8:9], s[0:1], 96')
    a(f's_sub_u32 s3, s2, {N_KG + N_LN + N_MOD}')
    a('v_lshrrev_b32 v1, 6, v0')
    a('v_and_b32 v2, 63, v0')
    a('v_readfirstlane_b32 s20, v1')
    a('v_lshlrev_b32 v3, 4, v2')
    a('s_mul_i32 s21, s20, 7168')
    a('s_mul_i32 s6, s3, 28672')
    a('s_add_u32 s6, s6, s21')
    a('s_waitcnt lgkmcnt(0)')
    srd(a, 12, 8, 1792*448*2)
    srd(a, 16, 4, WSZ)
    for i in range(7):
        if i % 4 == 0:
            a(f's_add_u32 m0, s21, {i*1024}')
            a(f's_add_u32 s7, s6, {i*1024}')
        a(f'buffer_load_dwordx4 v3, s[12:15], s7 offen offset:{(i%4)*1024} lds')
    a('v_bfe_u32 v4, v0, 5, 1')
    a('v_bfe_u32 v5, v0, 2, 2')
    a('v_lshl_add_u32 v4, v4, 2, v5')
    a('v_and_b32 v5, 1, v1')
    a('v_lshl_add_u32 v4, v5, 4, v4')
    a('v_mul_u32_u24 v4, 896, v4')
    a('v_bfe_u32 v6, v0, 4, 1')
    a('v_and_b32 v7, 3, v0')
    a('v_lshl_add_u32 v4, v6, 5, v4')
    a('v_lshl_add_u32 v4, v7, 3, v4')
    a('v_lshrrev_b32 v6, 1, v1')
    a('v_mul_u32_u24 v7, 448, v6')
    a('v_add_u32 v4, v4, v7')
    a('v_mul_u32_u24 v7, 784, v6')
    a('v_add_u32 v7, v7, v5')
    a('v_lshl_add_u32 v8, v7, 10, v3')
    a('s_lshl_b32 s22, s3, 11')
    a(f's_add_u32 s22, s22, {WD}')
    a('s_waitcnt vmcnt(0)')
    a('s_barrier')
    stamp(a)
    for i in range(7):
        a(f'ds_read_b64_tr_b16 {v(32+4*i,2)}, v4 offset:{64*i}')
        a(f'ds_read_b64_tr_b16 {v(34+4*i,2)}, v4 offset:{64*i+7168}')
    for i in range(7):
        a(f's_add_u32 s7, s22, {i*112*1024}')
        a(f's_waitcnt lgkmcnt({12-2*i})')
        a(f'buffer_store_dwordx4 {v(32+4*i,4)}, v8, s[16:19], s7 offen')
    stamp_end(a, 0)
    a.label('k1_end')
    a('s_endpgm')
    a.end_kernel(nm, denorm=False)
    a.launch(nm, tot + NPF, 256, K1_LDS)

N_CV, N_PP = 448, 112
UB = 33280
K2_LDS = UB + 96*80
def k2(a):
    nm = 'k2_kernel'
    a.begin_kernel(nm)
    stamp_begin(a)
    tot = N_CV + N_PP
    a(f's_cmp_ge_u32 s2, {tot}')
    a('s_cbranch_scc1 k2_end')
    a('s_load_dwordx2 s[4:5], s[0:1], 136')
    a(f's_cmp_ge_u32 s2, {N_CV}')
    a('s_cbranch_scc1 k2_prep')
    a('s_load_dwordx2 s[8:9], s[0:1], 64')
    a('s_lshl_b32 s3, s2, 13')
    a('v_lshl_add_u32 v1, v0, 5, s3')
    a('v_lshlrev_b32 v2, 4, v0')
    a('s_lshl_b32 s6, s2, 12')
    a('s_lshl_b32 s7, s2, 2')
    a(f's_add_u32 s7, s7, {MOD}')
    a('s_waitcnt lgkmcnt(0)')
    a('global_load_dwordx4 v[8:11], v1, s[4:5]')
    a('global_load_dwordx4 v[12:15], v1, s[4:5] offset:16')
    a(f's_add_u32 s10, s6, {KR}')
    a('s_add_u32 s12, s4, s10')
    a('s_addc_u32 s13, s5, 0')
    a('s_mov_b32 s14, 4096')
    a('s_mov_b32 s15, 0x20000')
    a('buffer_load_dwordx4 v[16:19], v2, s[12:15], 0 offen')
    a('buffer_load_dwordx4 v[20:23], v2, s[12:15], 0 offen offset:16')
    a('s_add_u32 s16, s4, s7')
    a('s_addc_u32 s17, s5, 0')
    a('s_load_dword s20, s[16:17], 0')
    a(f's_load_dword s21, s[16:17], {448*4}')
    a(f's_load_dword s22, s[16:17], {2*448*4}')
    a('s_lshl_b32 s10, s2, 1')
    a('s_and_b32 s11, s10, 0xfffffffc')
    a('s_add_u32 s8, s8, s11')
    a('s_addc_u32 s9, s9, 0')
    a('s_load_dword s23, s[8:9], 0')
    for i in range(4): a(f'v_mov_b32 v{24+i}, 0')
    a('v_cmp_gt_u32 vcc, 160, v0')
    a('s_and_saveexec_b64 s[18:19], vcc')
    a(f'ds_write_b128 v2, v[24:27] offset:{UB}')
    a('s_mov_b64 exec, s[18:19]')
    a('v_and_b32 v3, 7, v0')
    a('v_mul_u32_u24 v3, 4160, v3')
    a('v_lshrrev_b32 v4, 3, v0')
    a('v_lshl_add_u32 v3, v4, 4, v3')
    a('v_cmp_gt_u32 vcc, 24, v0')
    a('s_and_saveexec_b64 s[18:19], vcc')
    a('ds_write_b128 v3, v[24:27] offset:4096')
    a('s_mov_b64 exec, s[18:19]')
    a('v_lshrrev_b32 v3, 2, v0')
    a('v_mul_u32_u24 v3, 80, v3')
    a('v_and_b32 v4, 3, v0')
    a('v_lshl_add_u32 v3, v4, 4, v3')
    a('v_lshrrev_b32 v28, 6, v0')
    a('v_and_b32 v29, 7, v0')
    a('v_bfe_u32 v30, v0, 3, 2')
    a('v_bfe_u32 v31, v0, 5, 1')
    a('v_mul_u32_u24 v4, 4160, v29')
    a('v_sub_u32 v5, v31, v30')
    a('v_lshl_add_u32 v4, v5, 4, v4')
    a('v_lshlrev_b32 v5, 9, v28')
    a('v_sub_u32 v4, v4, v5')
    a(f'v_add_u32 v4, {4080 - 32*78}, v4')
    a('v_and_b32 v29, 31, v0')
    a('v_lshlrev_b32 v5, 3, v28')
    a('v_sub_u32 v5, v29, v5')
    a('v_add_u32 v5, 25, v5')
    a('v_mul_u32_u24 v5, 80, v5')
    a('v_lshl_add_u32 v5, v31, 4, v5')
    a('v_bfe_u32 v30, v0, 1, 2')
    a('v_and_b32 v6, 1, v0')
    a('v_lshl_or_b32 v30, v6, 2, v30')
    a('v_xor_b32 v30, v30, v31')
    a('v_lshlrev_b32 v6, 13, v28')
    a('v_lshl_add_u32 v6, v29, 7, v6')
    PW = 96
    for q in range(4):
        a(f'v_xor_b32 v7, {2*q}, v30')
        a(f'v_lshl_add_u32 v{PW+q}, v7, 4, v6')
    a('v_bfe_u32 v30, v0, 3, 2')
    a('v_bfe_u32 v6, v0, 2, 1')
    a('v_lshl_or_b32 v30, v6, 2, v30')
    a('v_and_b32 v6, 3, v0')
    a('v_lshlrev_b32 v6, 1, v6')
    a('v_xor_b32 v30, v30, v6')
    a('v_lshrrev_b32 v6, 2, v0')
    a('v_lshlrev_b32 v6, 7, v6')
    a('v_lshl_add_u32 v100, v30, 4, v6')
    a('v_xor_b32 v30, 1, v30')
    a('v_lshl_add_u32 v101, v30, 4, v6')
    if P.get('xtile'):
        a('s_lshl_b32 s6, s2, 7')
        a(f's_add_u32 s6, s6, {X1T}')
        a('s_lshl_b32 s10, s2, 5')
        a('s_and_b32 s10, s10, 64')
        a('v_and_b32 v102, 0x70, v2')
        a('v_xor_b32 v102, s10, v102')
        a('v_lshrrev_b32 v6, 3, v0')
        a('v_mul_u32_u24 v6, 57344, v6')
        a('v_add3_u32 v102, v102, v6, s6')
    else:
        a(f's_add_u32 s6, s6, {X1T}')
        a('v_add_u32 v102, s6, v2')
    a('s_waitcnt lgkmcnt(0)')
    a('v_add_f32 v6, 1.0, s21') if False else a('v_mov_b32 v6, s21')
    a('v_add_f32 v6, 1.0, v6')
    rb1(a, 6)
    a('s_bitcmp1_b32 s2, 0')
    a('s_lshl_b32 s24, s23, 16')
    a('s_and_b32 s25, s23, 0xffff0000')
    a('s_bitcmp1_b32 s2, 0')
    a('s_cselect_b32 s23, s25, s24')
    stamp(a)
    a('s_waitcnt vmcnt(2)')
    stamp(a)
    H = 104
    for e in range(8):
        a(f'v_lshlrev_b32 v{32+e}, 16, v{8+e}')
    for e in range(8):
        a(f'v_mul_f32 v{32+e}, v{32+e}, v6')
    for e in range(0, 8, 2):
        rb2(a, 32+e, 33+e, 40 + (e >> 1))
    for e in range(8):
        a(f'v_add_f32 v{32+e}, s20, v{32+e}')
    for e in range(4):
        a(f'v_cvt_pk_bf16_f32 v{H+e}, v{32+2*e}, v{33+2*e}')
    a(f'ds_write_b128 v3, {v(H,4)} offset:{UB+2560}')
    a('s_waitcnt vmcnt(0)')
    G = 16; G1 = 32; O = 40; O1 = 48
    a(f'ds_write_b128 v2, {v(G,4)} offset:{7*4160}')
    a(f'ds_write_b128 v2, {v(G+2,4)} offset:{3*4160}')
    for k in range(6): a(f'v_mov_b32 v{G1+k}, v{G+1+k}')
    a(f'ds_write_b128 v2, {v(G1,4)} offset:{5*4160}')
    a(f'ds_write_b128 v2, {v(G1+2,4)} offset:{1*4160}')
    for k in range(6): a(f'v_alignbit_b32 v{O+k}, v{G+k+1}, v{G+k}, 16')
    a(f'ds_write_b128 v2, {v(O,4)} offset:{6*4160}')
    a(f'ds_write_b128 v2, {v(O+2,4)} offset:{2*4160}')
    for k in range(6): a(f'v_alignbit_b32 v{O1+k}, v{G+k+2}, v{G+k+1}, 16')
    a(f'ds_write_b128 v2, {v(O1,4)} offset:{4*4160}')
    a(f'ds_write_b128 v2, {v(O1+2,4)} offset:{0*4160}')
    a('s_waitcnt lgkmcnt(0)')
    a('s_barrier')
    stamp(a)
    A0, A1 = 64, 80
    FB = 16
    trip = [(dl, kk) for dl in range(8) for kk in range(2)]
    def loads(n):
        dl, kk = trip[n]
        qp = 2*dl - kk
        b = FB + (n % 3)*16
        oa = 32*(14 - qp)
        ob = UB + (7 - dl)*80 + 32*kk
        a(f'ds_read_b128 {v(b,4)}, v4 offset:{oa+2048}')
        a(f'ds_read_b128 {v(b+4,4)}, v5 offset:{ob}')
        a(f'ds_read_b128 {v(b+8,4)}, v5 offset:{ob+2560}')
        a(f'ds_read_b128 {v(b+12,4)}, v4 offset:{oa}')
    loads(0); loads(1)
    for n in range(16):
        if n + 2 < 16: loads(n + 2)
        rem = min(2, 15 - n) * 4
        b = FB + (n % 3)*16
        a(f's_waitcnt lgkmcnt({rem+2})')
        a(f'v_mfma_f32_32x32x16_bf16 {v(A0,16)}, {v(b,4)}, {v(b+4,4)}, {"0" if n == 0 else v(A0,16)}')
        a(f's_waitcnt lgkmcnt({rem+1})')
        a(f'v_mfma_f32_32x32x16_bf16 {v(A1,16)}, {v(b,4)}, {v(b+8,4)}, {"0" if n == 0 else v(A1,16)}')
        a(f's_waitcnt lgkmcnt({rem})')
        a(f'v_mfma_f32_32x32x16_bf16 {v(A1,16)}, {v(b+12,4)}, {v(b+4,4)}, {v(A1,16)}')
    a('s_barrier')
    stamp(a)
    for c, A in enumerate((A0, A1)):
        for q in range(4):
            a(f'ds_write_b128 v{PW+q}, {v(A+4*q,4)} offset:{4096*c}')
    a('s_waitcnt lgkmcnt(0)')
    a('s_barrier')
    stamp(a)
    for w in range(4):
        a(f'ds_read_b128 {v(16+8*w,4)}, v100 offset:{8192*w}')
        a(f'ds_read_b128 {v(20+8*w,4)}, v101 offset:{8192*w}')
    for e in range(4):
        a(f'v_lshlrev_b32 v{48+2*e}, 16, v{H+e}')
        a(f'v_and_b32 v{49+2*e}, 0xffff0000, v{H+e}')
    for e in range(8): a(f'v_mul_f32 v{48+e}, s23, v{48+e}')
    for e in range(0, 8, 2): rb2(a, 48+e, 49+e, 56 + (e >> 1))
    for e in range(8): a(f'v_and_b32 v{8+e}, 0xffff0000, v{8+e}')
    a('s_waitcnt lgkmcnt(4)')
    for e in range(8): a(f'v_add_f32 v{16+e}, v{16+e}, v{24+e}')
    a('s_waitcnt lgkmcnt(0)')
    for e in range(8): a(f'v_add_f32 v{32+e}, v{32+e}, v{40+e}')
    for e in range(8): a(f'v_add_f32 v{16+e}, v{16+e}, v{32+e}')
    for e in range(0, 8, 2): rb2(a, 16+e, 17+e, 56 + (e >> 1))
    for e in range(8): a(f'v_add_f32 v{16+e}, v{16+e}, v{48+e}')
    for e in range(0, 8, 2): rb2(a, 16+e, 17+e, 56 + (e >> 1))
    for e in range(8): a(f'v_mul_f32 v{16+e}, s22, v{16+e}')
    for e in range(0, 8, 2): rb2(a, 16+e, 17+e, 56 + (e >> 1))
    for e in range(8): a(f'v_add_f32 v{16+e}, v{16+e}, v{8+e}')
    for e in range(4): a(f'v_cvt_pk_bf16_f32 v{24+e}, v{16+2*e}, v{17+2*e}')
    a('global_store_dwordx4 v102, v[24:27], s[4:5]')
    stamp_end(a, 1)

    a.label('k2_prep'); a.hist = []
    St.n = 1
    SC = 28672
    a('s_load_dwordx4 s[8:11], s[0:1], 80')
    a(f's_sub_u32 s3, s2, {N_CV}')
    a('s_lshr_b32 s6, s3, 1')
    a('s_lshl_b32 s6, s6, 6')
    a('v_and_b32 v1, 3, v0')
    a('v_lshrrev_b32 v2, 2, v0')
    a('v_mul_u32_u24 v3, 3584, v2')
    a('v_lshl_add_u32 v3, v1, 4, v3')
    a('v_add_u32 v3, s6, v3')
    a('v_lshlrev_b32 v4, 2, v2')
    a('s_waitcnt lgkmcnt(0)')
    a('s_bitcmp1_b32 s3, 0')
    a('s_cselect_b32 s12, s10, s8')
    a('s_cselect_b32 s13, s11, s9')
    a(f's_mov_b32 s14, {448*1792*2}')
    a('s_mov_b32 s15, 0x20000')
    srd(a, 16, 4, WSZ)
    a(f's_mov_b32 s20, {MOD + 3*448*4}')
    a(f's_mov_b32 s21, {MOD + 4*448*4}')
    for i in range(7):
        a(f'buffer_load_dword v{10+i}, v4, s[16:19], s21 offen offset:{256*i}')
    for i in range(7):
        a(f'buffer_load_dword v{17+i}, v4, s[16:19], s20 offen offset:{256*i}')
    for i in range(7):
        a(f's_mov_b32 s7, {229376*i}')
        a(f'buffer_load_dwordx4 {v(32+4*i,4)}, v3, s[12:15], s7 offen')
    a('v_lshlrev_b32 v5, 4, v0')
    a('v_lshrrev_b32 v6, 4, v0')
    a('v_lshlrev_b32 v6, 8, v6')
    a('v_lshl_add_u32 v6, v1, 5, v6')
    a('v_lshrrev_b32 v24, 6, v0')
    a('v_bfe_u32 v7, v0, 5, 1')
    a('v_bfe_u32 v8, v0, 2, 2')
    a('v_lshl_add_u32 v7, v7, 3, v8')
    a('v_lshlrev_b32 v7, 6, v7')
    a('v_bfe_u32 v8, v0, 4, 1')
    a('v_lshl_add_u32 v7, v8, 5, v7')
    a('v_lshl_add_u32 v7, v1, 3, v7')
    a('v_mul_u32_u24 v8, 7168, v24')
    a('v_add_u32 v7, v7, v8')
    a('v_and_b32 v25, 63, v0')
    a('v_lshl_add_u32 v8, v25, 4, v8')
    a('v_lshlrev_b32 v9, 2, v25')
    a('v_readfirstlane_b32 s24, v24')
    a('s_mul_i32 s22, s3, 29696')
    a(f's_add_u32 s22, s22, {WP}')
    a('s_waitcnt vmcnt(14)')
    for i in range(7): a(f'v_add_f32 v{10+i}, 1.0, v{10+i}')
    for i in range(7): rb1(a, 10+i)
    S, B = 64, 72
    for i in range(7):
        a(f's_waitcnt vmcnt({6-i})')
        for j in range(4):
            a(f'v_lshlrev_b32 v{80+2*j}, 16, v{32+4*i+j}')
            a(f'v_and_b32 v{81+2*j}, 0xffff0000, v{32+4*i+j}')
        for j in range(8):
            if i == 0: a(f'v_mul_f32 v{B+j}, v{80+j}, v{17+i}')
            else: a(f'v_fmac_f32 v{B+j}, v{80+j}, v{17+i}')
        for j in range(8):
            a(f'v_mul_f32 v{80+j}, v{80+j}, v{10+i}')
        for j in range(4):
            a(f'v_cvt_pk_bf16_f32 v{32+4*i+j}, v{80+2*j}, v{81+2*j}')
        a(f'ds_write_b128 v5, {v(32+4*i,4)} offset:{4096*i}')
        for j in range(8):
            if i == 0: a(f'v_mov_b32 v{S+j}, v{80+j}')
            else: a(f'v_add_f32 v{S+j}, v{S+j}, v{80+j}')
    for m in ('row_ror:4', 'row_ror:8'):
        for j in range(16):
            a(f'v_add_f32_dpp v{S+j}, v{S+j}, v{S+j} {m} row_mask:0xf bank_mask:0xf')
    a(f'ds_write_b128 v6, {v(S,4)} offset:{SC}')
    a(f'ds_write_b128 v6, {v(S+4,4)} offset:{SC+16}')
    a(f'ds_write_b128 v6, {v(B,4)} offset:{SC+128}')
    a(f'ds_write_b128 v6, {v(B+4,4)} offset:{SC+144}')
    a('s_waitcnt lgkmcnt(0)')
    a('s_barrier')
    stamp(a)
    for i in range(7):
        a(f'ds_read_b64_tr_b16 {v(32+4*i,2)}, v7 offset:{1024*i}')
        a(f'ds_read_b64_tr_b16 {v(34+4*i,2)}, v7 offset:{1024*i+256}')
    for i in range(7):
        a(f's_add_u32 s7, s22, {i*1024}')
        a(f's_waitcnt lgkmcnt({12-2*i})')
        a(f'buffer_store_dwordx4 {v(32+4*i,4)}, v8, s[16:19], s7 offen')
    a('s_cmp_lg_u32 s24, 0')
    a('s_cbranch_scc1 k2_end')
    for i in range(16):
        a(f'ds_read_b32 v{80+i}, v9 offset:{SC+256*i}')
    a('v_mov_b32 v65, 0'); a('v_mov_b32 v66, 0'); a('v_mov_b32 v67, 0')
    a(f's_add_u32 s7, s22, {28*1024}')
    a('s_waitcnt lgkmcnt(0)')
    for st in (8, 4, 2, 1):
        for i in range(st):
            a(f'v_add_f32 v{80+i}, v{80+i}, v{80+st+i}')
    a('v_mov_b32 v81, v80')
    rb1(a, 81)
    a('v_sub_f32 v82, v80, v81')
    a('v_cvt_pk_bf16_f32 v64, v81, v82')
    a('buffer_store_dwordx4 v[64:67], v8, s[16:19], s7 offen')
    stamp_end(a, 1)
    a.label('k2_end')
    a('s_endpgm')
    a.end_kernel(nm, denorm=False)
    a.launch(nm, tot, 256, K2_LDS)

STAT = 114688
K3_LDS = STAT + 2048
def divmod7(a, sj, sq, sr):
    a(f's_mul_i32 s{sq}, s{sj}, 37')
    a(f's_lshr_b32 s{sq}, s{sq}, 8')
    a(f's_mul_i32 s{sr}, s{sq}, 7')
    a(f's_sub_u32 s{sr}, s{sj}, s{sr}')

def k3(a):
    nm = 'k3_kernel'
    CH, PRE = P['CH'], P['PRE']
    a.begin_kernel(nm)
    stamp_begin(a)
    a('s_cmp_ge_u32 s2, 224')
    a('s_cbranch_scc1 k3_end')
    a('s_load_dwordx2 s[4:5], s[0:1], 136')
    a('s_and_b32 s6, s2, 7')
    a('s_lshr_b32 s7, s2, 3')
    divmod7(a, 7, 8, 9)
    if P['g1map'] == '2x14':
        a('s_lshr_b32 s12, s8, 1'); a('s_lshl_b32 s10, s6, 1'); a('s_add_u32 s10, s10, s12')
        a('s_and_b32 s11, s8, 1'); a('s_mul_i32 s11, s11, 7'); a('s_add_u32 s11, s11, s9')
    else:
        a('s_lshr_b32 s10, s6, 1'); a('s_lshl_b32 s10, s10, 2'); a('s_add_u32 s10, s10, s8')
        a('s_and_b32 s11, s6, 1'); a('s_mul_i32 s11, s11, 7'); a('s_add_u32 s11, s11, s9')
    a('v_lshrrev_b32 v1, 6, v0')
    a('v_and_b32 v2, 63, v0')
    a('v_readfirstlane_b32 s20, v1')
    a('v_lshrrev_b32 v3, 4, v2')
    a('v_and_b32 v4, 15, v0')
    a('v_lshlrev_b32 v5, 2, v3')
    a('v_xor_b32 v4, v4, v5')
    a('v_lshlrev_b32 v4, 4, v4')
    a('v_lshl_add_u32 v4, v3, 12, v4')
    a('v_lshl_add_u32 v4, v1, 14, v4')
    a('v_lshlrev_b32 v5, 4, v2')
    a('s_lshl_b32 s21, s10, 8')
    a(f's_add_u32 s21, s21, {X1T}')
    a('s_lshl_b32 s22, s11, 2')
    a('s_add_u32 s22, s22, s20')
    a(f's_mul_i32 s23, s22, {2*29*1024}')
    a(f's_add_u32 s23, s23, {WP}')
    a(f's_add_u32 s24, s23, {29*1024}')
    a('s_lshl_b32 s25, s20, 10')
    a('s_waitcnt lgkmcnt(0)')
    srd(a, 16, 4, WSZ)
    nissued = [0]
    order = []
    def issue(ks):
        if ks < 28:
            a(f's_add_u32 m0, s25, {ks*4096}')
            a(f's_add_u32 s26, s21, {ks*65536}')
            a('buffer_load_dwordx4 v4, s[16:19], s26 offen lds')
            order.append(('D', ks))
        if ks % 4 == 0:
            a(f's_add_u32 s27, s23, {ks*1024}')
            a(f's_add_u32 s28, s24, {ks*1024}')
        a(f'buffer_load_dwordx4 {a_(8*ks,4)}, v5, s[16:19], s27 offen offset:{(ks%4)*1024}')
        order.append(('G', ks))
        a(f'buffer_load_dwordx4 {a_(8*ks+4,4)}, v5, s[16:19], s28 offen offset:{(ks%4)*1024}')
        order.append(('U', ks))
    def wait_through(item):
        idx = order.index(item)
        n = len(order) - 1 - idx
        assert n <= 63
        a(f's_waitcnt vmcnt({n})')
    for ks in range(PRE): issue(ks)
    a('v_bfe_u32 v6, v0, 5, 1')
    a('v_bfe_u32 v7, v0, 2, 2')
    a('v_lshl_add_u32 v12, v6, 3, v7')
    a('v_lshlrev_b32 v12, 8, v12')
    a('v_bfe_u32 v13, v0, 4, 1')
    a('v_lshl_add_u32 v12, v13, 5, v12')
    a('v_and_b32 v13, 3, v0')
    a('v_lshl_add_u32 v12, v13, 3, v12')
    a('v_xor_b32 v7, v7, v1')
    for jj in range(4):
        a(f'v_xor_b32 v13, {jj}, v7')
        a(f'v_lshl_add_u32 v{8+jj}, v13, 6, v12')
    if P.get('x_trlin'):
        for jj in range(4): a(f'v_lshlrev_b32 v{8+jj}, 3, v2')
    XB = 16
    EF = 48
    ACC = 128
    S1, S2 = 64, 66
    T = 68
    for i in range(16): a(f'v_mov_b32 v{EF+i}, 0')
    for i in range(4): a(f'v_mov_b32 v{S1+i}, 0')
    def trreads(ks):
        b = XB + (ks & 1)*16
        off = (ks % 16)*4096
        for jj in range(4):
            a(f'ds_read_b64_tr_b16 {v(b+4*jj,2)}, v{8+jj} offset:{off}')
            a(f'ds_read_b64_tr_b16 {v(b+4*jj+2,2)}, v{8+jj} offset:{off+1024}')
    def sync_for(ks):
        last = min(ks + CH - 1, 27)
        wait_through(('U', last))
        if not (P.get('x_nobar') and ks > 8): a('s_barrier')
    stamp(a)
    sync_for(0)
    stamp(a)
    trreads(0)
    for ks in range(28):
        if ks in (4, 8, 12, 16, 20, 24): stamp(a)
        if ks + PRE <= 28: issue(ks + PRE)
        if ks + 1 < 28:
            if (ks + 1) % CH == 0: sync_for(ks + 1)
            if ks + 1 == 16:
                for jj in range(4): a(f'v_add_u32 v{8+jj}, 0x10000, v{8+jj}')
            trreads(ks + 1)
        rem = 8 if ks + 1 < 28 else 0
        b = XB + (ks & 1)*16
        stats = []
        for dw in range(4):
            t0, t1 = T + 2*(dw & 1), T + 2*(dw & 1) + 1
            stats.append([f'v_lshlrev_b32 v{t0}, 16, v{b+dw}', f'v_and_b32 v{t1}, 0xffff0000, v{b+dw}', f'v_add_f32 v{S1}, v{S1}, v{t0}'])
            stats.append([f'v_add_f32 v{S1+1}, v{S1+1}, v{t1}', f'v_fmac_f32 v{S2}, v{t0}, v{t0}', f'v_fmac_f32 v{S2+1}, v{t1}, v{t1}'])
        for jj in range(4):
            a(f's_waitcnt lgkmcnt({rem + 6 - 2*jj})')
            c0 = '0' if ks == 0 else v(ACC+32*jj, 16)
            c1 = '0' if ks == 0 else v(ACC+32*jj+16, 16)
            a(f'v_mfma_f32_32x32x16_bf16 {v(ACC+32*jj,16)}, {a_(8*ks,4)}, {v(b+4*jj,4)}, {c0}')
            for x in stats[2*jj]:
                if not P.get('x_nostat'): a(x)
            a(f'v_mfma_f32_32x32x16_bf16 {v(ACC+32*jj+16,16)}, {a_(8*ks+4,4)}, {v(b+4*jj,4)}, {c1}')
            for x in stats[2*jj+1]:
                if not P.get('x_nostat'): a(x)
    stamp(a)
    a(f'v_add_f32 v{S1}, v{S1}, v{S1+1}')
    a(f'v_add_f32 v{S2}, v{S2}, v{S2+1}')
    a(f'v_mov_b32 v{S1+1}, v{S1}')
    a(f'v_mov_b32 v{S2+1}, v{S2}')
    a(f'v_permlane32_swap_b32 v{S1}, v{S1+1}')
    a(f'v_permlane32_swap_b32 v{S2}, v{S2+1}')
    a(f'v_add_f32 v{S1}, v{S1}, v{S1+1}')
    a(f'v_add_f32 v{S2}, v{S2}, v{S2+1}')
    a(f'v_mul_f32 v{S1}, {fhex(1.0/448)}, v{S1}')
    a(f'v_mul_f32 v{S2}, {fhex(1.0/448)}, v{S2}')
    a(f'v_fma_f32 v{S2}, -v{S1}, v{S1}, v{S2}')
    a(f'v_max_f32 v{S2}, 0, v{S2}')
    rb1(a, S2)
    a(f'v_add_f32 v{S2}, {fhex(1e-5)}, v{S2}')
    rb1(a, S2)
    a(f'v_sqrt_f32 v{S2}, v{S2}')
    a(f'v_cvt_pk_bf16_f32 v{T}, -v{S1}, -v{S1}')
    a(f'v_cvt_pk_bf16_f32 v{T+1}, v{S2}, v{S2}')
    a(f'v_and_b32 v{S2}, 0xffff0000, v{T+1}')
    a(f'v_rcp_f32 v{S2}, v{S2}')
    a('v_cmp_lt_u32 vcc, 31, v2')
    a(f'v_mul_f32 v{T+3}, v{S2}, v{S2}')
    a(f'v_cndmask_b32 v{T+2}, v{T}, v{T+1}, vcc')
    a('v_lshlrev_b32 v12, 3, v0')
    a(f'v_add_u32 v12, {STAT}, v12')
    a(f'ds_write_b64 v12, {v(T+2,2)}')
    a('s_waitcnt lgkmcnt(0)')
    a('s_barrier')
    stamp(a)
    R2 = 72
    for jj in range(4):
        a(f'v_xor_b32 v13, {jj*512}, v12')
        a(f'ds_read_b32 v{EF+4*jj}, v13')
        a(f'ds_read_b32 v{R2+2*jj}, v13 offset:4')
    a('s_lshl_b32 s26, s10, 2')
    for jj in range(4):
        a(f's_xor_b32 s27, s20, {jj}')
        a('s_add_u32 s27, s27, s26')
        a('s_mul_i32 s27, s27, 112')
        a('s_lshl_b32 s28, s22, 1')
        a('s_add_u32 s27, s27, s28')
        a('s_lshl_b32 s27, s27, 10')
        a(f's_add_u32 s{30+jj}, s27, {HID}')
    wait_through(('U', 28))
    for jj in range(4):
        a(f's_waitcnt lgkmcnt({6-2*jj})')
        a(f'v_mfma_f32_32x32x16_bf16 {v(ACC+32*jj,16)}, {a_(8*28,4)}, {v(EF+4*jj,4)}, {v(ACC+32*jj,16)}')
        a(f'v_mfma_f32_32x32x16_bf16 {v(ACC+32*jj+16,16)}, {a_(8*28+4,4)}, {v(EF+4*jj,4)}, {v(ACC+32*jj+16,16)}')
    stamp(a)
    for jj in range(4):
        g, u = ACC+32*jj, ACC+32*jj+16
        for i in range(16): a(f'v_max_f32 v{g+i}, 0, v{g+i}')
        for i in range(0, 16, 2):
            a(f'v_pk_mul_f32 {v(u+i,2)}, {v(u+i,2)}, {v(R2+2*jj,2)} op_sel_hi:[1,0]')
        for i in range(0, 16, 2):
            a(f'v_pk_mul_f32 {v(g+i,2)}, {v(g+i,2)}, {v(u+i,2)}')
        ob = XB + 8*jj
        for i in range(8):
            a(f'v_cvt_pk_bf16_f32 v{ob+i}, v{g+2*i}, v{g+2*i+1}')
        a(f'buffer_store_dwordx4 {v(ob,4)}, v5, s[16:19], s{30+jj} offen')
        a(f'buffer_store_dwordx4 {v(ob+4,4)}, v5, s[16:19], s{30+jj} offen offset:1024')
    stamp_end(a, 2)
    a.label('k3_end')
    a('s_endpgm')
    a.end_kernel(nm, accum=256, denorm=False)
    a.launch(nm, 224, 256, K3_LDS)

K4_LDS = 49152
def k4(a):
    nm = 'k4_kernel'
    RD = P['RD']
    a.begin_kernel(nm)
    stamp_begin(a)
    a('s_cmp_ge_u32 s2, 224')
    a('s_cbranch_scc1 k4_end')
    a('s_load_dwordx2 s[4:5], s[0:1], 136')
    a('s_load_dwordx2 s[36:37], s[0:1], 120')
    a('s_and_b32 s6, s2, 7')
    a('s_lshr_b32 s7, s2, 3')
    divmod7(a, 7, 8, 9)
    a('s_lshl_b32 s10, s6, 2'); a('s_add_u32 s10, s10, s8')
    a('v_lshrrev_b32 v1, 6, v0')
    a('v_and_b32 v2, 63, v0')
    a('v_readfirstlane_b32 s20, v1')
    a('v_mul_u32_u24 v3, 28672, v1')
    a('v_lshl_add_u32 v3, v2, 4, v3')
    a('s_and_b32 s21, s20, 1')
    a('s_lshr_b32 s22, s20, 1')
    a('s_lshl_b32 s23, s10, 1')
    a('s_lshl_b32 s24, s9, 1')
    a('s_add_u32 s25, s23, s21')
    a('s_add_u32 s26, s24, s22')
    a('s_xor_b32 s27, s25, 1')
    a('s_xor_b32 s28, s26, 1')
    a(f's_mul_i32 s30, s25, {112*1024}'); a(f's_add_u32 s30, s30, {HID}')
    a(f's_mul_i32 s31, s27, {112*1024}'); a(f's_add_u32 s31, s31, {HID}')
    a(f's_mul_i32 s32, s26, {112*1024}'); a(f's_add_u32 s32, s32, {WD}')
    a(f's_mul_i32 s33, s28, {112*1024}'); a(f's_add_u32 s33, s33, {WD}')
    a('s_waitcnt lgkmcnt(0)')
    srd(a, 16, 4, WSZ)
    srd(a, 12, 36, 2048*448*2)
    order = []
    def issue(i):
        if i > 0 and i % 4 == 0:
            for r in (30, 31, 32, 33): a(f's_add_u32 s{r}, s{r}, 4096')
        b = (i % RD)*16
        for n, r in enumerate((32, 30, 31, 33)):
            a(f'buffer_load_dwordx4 {a_(b+4*n,4)}, v3, s[16:19], s{r} offen offset:{(i%4)*1024}')
            order.append((i, n))
    def wait_through(item):
        n = len(order) - 1 - order.index(item)
        assert n <= 63
        a(f's_waitcnt vmcnt({n})')
    for i in range(RD): issue(i)
    a('v_bfe_u32 v4, v0, 5, 1')
    a('v_and_b32 v5, 31, v0')
    a('v_lshlrev_b32 v6, 14, v4')
    a('v_lshl_add_u32 v6, v5, 1, v6')
    a('v_lshlrev_b32 v7, 4, v4')
    a('s_lshl_b32 s34, s25, 5')
    a('v_add_u32 v8, s34, v5')
    a('v_mul_u32_u24 v8, 896, v8')
    a('v_lshl_add_u32 v8, v4, 3, v8')
    a('s_lshl_b32 s34, s26, 6')
    a('v_add_u32 v8, s34, v8')
    a('s_lshl_b32 s34, s26, 17')
    a('s_lshl_b32 s35, s25, 6')
    a('s_add_u32 s34, s34, s35')
    a(f's_add_u32 s34, s34, {X1T}')
    a('s_lshl_b32 s35, s26, 7')
    a(f's_add_u32 s35, s35, {MOD + 5*448*4}')
    a('v_lshlrev_b32 v9, 4, v2')
    for sl in range(1, 4):
        a(f'v_xor_b32 v13, {sl}, v1')
        a('v_mul_u32_u24 v13, 12288, v13')
        a(f'v_add_u32 v{9+sl}, v13, v9')
    a('v_mul_u32_u24 v13, 12288, v1')
    a('v_add_u32 v9, v13, v9')
    ACC = 64
    XR = 16
    GB = 32
    epi = []
    for q in range(4):
        for r in range(4):
            epi.append((f's_add_u32 s38, s34, {(8*q+r)*4096}', f'buffer_load_ushort v{XR+4*q+r}, v6, s[16:19], s38 offen'))
    for q in range(4):
        epi.append((None, f'buffer_load_dwordx4 {v(GB+4*q,4)}, v7, s[16:19], s35 offen offset:{32*q}'))
    for i in range(28):
        if i in (0, 1, 4, 8, 12, 16, 20, 24): stamp(a)
        b = (i % RD)*16
        W0, H0, H1, W1 = a_(b,4), a_(b+4,4), a_(b+8,4), a_(b+12,4)
        c = lambda n: '0' if i == 0 else v(ACC+16*n, 16)
        wait_through((i, 1))
        a(f'v_mfma_f32_32x32x16_bf16 {v(ACC,16)}, {W0}, {H0}, {c(0)}')
        wait_through((i, 2))
        a(f'v_mfma_f32_32x32x16_bf16 {v(ACC+16,16)}, {W0}, {H1}, {c(1)}')
        wait_through((i, 3))
        a(f'v_mfma_f32_32x32x16_bf16 {v(ACC+32,16)}, {W1}, {H0}, {c(2)}')
        a(f'v_mfma_f32_32x32x16_bf16 {v(ACC+48,16)}, {W1}, {H1}, {c(3)}')
        if i + RD < 28: issue(i + RD)
        elif epi:
            for _ in range(4):
                if epi:
                    x, y = epi.pop(0)
                    if x: a(x)
                    a(y); order.append(('e', len(order)))
    assert not epi
    stamp(a)
    for sl in range(1, 4):
        for q in range(4):
            a(f'ds_write_b128 v{9+sl}, {v(ACC+16*sl+4*q,4)} offset:{(sl-1)*4096 + q*1024}')
    a('s_waitcnt lgkmcnt(0)')
    a('s_barrier')
    stamp(a)
    for n in range(12):
        a(f'ds_read_b128 {v(ACC+16+4*n,4)}, v9 offset:{n*1024}')
    a('s_waitcnt vmcnt(0)')
    for i in range(16): a(f'v_lshlrev_b32 v{XR+i}, 16, v{XR+i}')
    for sl in range(3):
        a(f's_waitcnt lgkmcnt({8-4*sl})')
        for i in range(16):
            a(f'v_add_f32 v{ACC+i}, v{ACC+i}, v{ACC+16+16*sl+i}')
    for i in range(0, 16, 2): rb2(a, ACC+i, ACC+i+1, 48 + ((i >> 1) & 3))
    for i in range(16): a(f'v_mul_f32 v{ACC+i}, v{ACC+i}, v{GB+i}')
    for i in range(0, 16, 2): rb2(a, ACC+i, ACC+i+1, 48 + ((i >> 1) & 3))
    for i in range(16): a(f'v_add_f32 v{ACC+i}, v{ACC+i}, v{XR+i}')
    for i in range(8): a(f'v_cvt_pk_bf16_f32 v{52+i}, v{ACC+2*i}, v{ACC+2*i+1}')
    for q in range(4):
        a(f'buffer_store_dwordx2 {v(52+2*q,2)}, v8, s[12:15], 0 offen offset:{16*q}')
    stamp_end(a, 3)
    a.label('k4_end')
    a('s_endpgm')
    a.end_kernel(nm, denorm=False)
    a.launch(nm, 224, 256, K4_LDS)

HEADER = open('adaLN_cond__ssm_conv_s4__glu_gated_reglu__prompt.s.ref').read().split('; Override launch')[0]
def build(fn, **kw):
    P.update(kw)
    a = Asm()
    for ch in str(P.get('ks', '1234')):
        import kb, ka
        {'a': ka.ka, '1': k1, '2': k2, '3': k3, '4': k4, 'b': kb.kb, 'p': kb.kp, 'z': kb.kz}[ch](a)
    a.label('code_end')
    open(fn, 'w').write(a.text(HEADER))
    print('nops inserted', a.nops)

if __name__ == '__main__':
    out = sys.argv[1] if len(sys.argv) > 1 else 'v1.s'
    kw = {}
    for x in sys.argv[2:]:
        k, val = x.split('=')
        kw[k] = int(val) if val.lstrip('-').isdigit() else val
    build(out, **kw)
```

```python
from gen import *
import gen
ZR = 0x1310000
STA = ZR
FLG = ZR + 0x8000
WSZ2 = 0x1380000
XL = 57344
RED = 114688
KB_LDS = RED + 32768
NH = 32
SPIN = 100000

class Q:
    def __init__(self, a, name, mx):
        self.a = a; self.name = name; self.mx = mx; self.order = []; self.done = -1
    def add(self, tag): self.order.append(tag)
    def cnt(self, tag):
        idx = max(self.order.index(t) for t in tag) if isinstance(tag, list) else self.order.index(tag)
        if idx <= self.done: return None
        self.done = idx
        n = len(self.order) - 1 - idx
        assert n <= self.mx, (self.name, tag, n)
        return n
    def all_done(self): self.done = len(self.order) - 1

def kb(a, kidx=2):
    SPN = str(P.get('sp', 'pro,sync0,s14,s28,s42,T0,epiB,g2e,redE,pollL,g2l')).split(',')
    def nstamp(n):
        if n in SPN: stamp(a)
    nm = 'kb_kernel'
    FSH = P.get('FSH', 7)
    assert 0x8000 + (16*128 << FSH) <= P['zero']*0x10000
    NF = P.get('NF', 15); SA = P.get('SA', 0); SL = P.get('SL', -6); PE = P.get('PE', 19); FE = P.get('FE', 13)
    FS = P.get('FS', 6); PL = P.get('PL', 22); HPRE = P.get('HPRE', 0)
    a.begin_kernel(nm)
    stamp_begin(a)
    a(f's_cmp_ge_u32 s2, {224 + NH}')
    a('s_cbranch_scc1 kb_end')
    a('s_load_dwordx2 s[4:5], s[0:1], 136')
    a('s_load_dwordx2 s[36:37], s[0:1], 120')
    a('v_lshrrev_b32 v1, 6, v0')
    a('v_and_b32 v2, 63, v0')
    a(f's_cmp_lt_u32 s2, {NH}')
    a('s_cbranch_scc1 kb_help')
    a(f's_sub_u32 s3, s2, {NH}')
    a('s_and_b32 s6, s3, 7')
    a('s_lshr_b32 s7, s3, 3')
    divmod7(a, 7, 8, 9)
    if P['g1map'] == '2x14':
        a('s_lshr_b32 s12, s8, 1'); a('s_lshl_b32 s10, s6, 1'); a('s_add_u32 s10, s10, s12')
        a('s_and_b32 s12, s8, 1')
    else:
        a('s_lshr_b32 s10, s6, 1'); a('s_lshl_b32 s10, s10, 2'); a('s_add_u32 s10, s10, s8')
        a('s_and_b32 s12, s6, 1')
    a('s_mul_i32 s11, s12, 7'); a('s_add_u32 s11, s11, s9')
    a('v_readfirstlane_b32 s20, v1')
    a('v_lshlrev_b32 v3, 4, v2')
    a('v_lshlrev_b32 v4, 4, v0')
    a(f's_mul_i32 s21, s10, {2*XL}')
    a(f's_add_u32 s21, s21, {X1T}')
    a('s_lshl_b32 s22, s11, 2')
    a('s_add_u32 s22, s22, s20')
    a(f's_mul_i32 s23, s22, {2*29*1024}')
    a(f's_add_u32 s23, s23, {WP}')
    a(f's_add_u32 s24, s23, {29*1024}')
    a('s_lshl_b32 s25, s20, 10')
    a('s_waitcnt lgkmcnt(0)')
    srd(a, 16, 4, WSZ2)
    vm = Q(a, 'vm', 63); lg = Q(a, 'lg', 15)
    def wait(vt=None, lt=None):
        nv = vm.cnt(vt) if vt is not None else None
        nl = lg.cnt(lt) if lt is not None else None
        s_ = ''
        if nv is not None: s_ += f' vmcnt({nv})'
        if nl is not None: s_ += f' lgkmcnt({nl})'
        if s_: a('s_waitcnt' + s_)
    GB = 56
    def issue(t):
        k = t[0]
        if k == 'D':
            half, kp = t[1], t[2]
            a(f's_add_u32 m0, s25, {kp*4096 + half*XL}')
            a(f's_add_u32 s26, s21, {kp*4096 + half*XL}')
            a('buffer_load_dwordx4 v4, s[16:19], s26 offen lds')
        elif k == 'G':
            ks = t[1]
            if ks % 4 == 0 and ks: a('s_add_u32 s23, s23, 4096')
            a(f'buffer_load_dwordx4 {a_(8*ks,4)}, v3, s[16:19], s23 offen offset:{(ks%4)*1024}')
        elif k == 'U':
            ks = t[1]
            if ks % 4 == 0 and ks: a('s_add_u32 s24, s24, 4096')
            a(f'buffer_load_dwordx4 {a_(8*ks+4,4)}, v3, s[16:19], s24 offen offset:{(ks%4)*1024}')
        elif k == 'W':
            i, b = t[1], t[2]
            if i % 4 == 0 and i: a(f's_add_u32 s{27+b}, s{27+b}, 4096')
            a(f'buffer_load_dwordx4 {a_(8*i+4*b,4)}, v3, s[16:19], s{27+b} offen offset:{(i%4)*1024}')
        elif k == 'H':
            ph, i = t[1], t[2]
            if i % 4 == 0 and i: a(f's_add_u32 s{29+ph}, s{29+ph}, 4096')
            a(f'buffer_load_dwordx4 {v(hreg(ph,i),4)}, v3, s[16:19], s{29+ph} offen offset:{(i%4)*1024} sc1')
        elif k == 'S':
            a(f'buffer_load_dwordx2 {v(EF+4*t[1],2)}, v9, s[16:19], s31 offen offset:{512*t[1]} sc1')
        elif k == 'gb':
            a(f'buffer_load_dwordx4 {v(GB+4*t[1],4)}, v15, s[16:19], s32 offen offset:{32*t[1]}')
        elif k == 'P':
            if P.get('x_nopoll') and t[1] == 0: a('buffer_load_dword v88, v3, s[16:19], s27 offen')
            else: a(f'buffer_load_dword v{88+t[1]}, v10, s[16:19], s{33+8*t[1]} offen sc1')
        else: raise ValueError(t)
        vm.add(t)
    EF = 40
    def hreg(ph, i):
        if ph == 0: return 128 + 4*(i % 16)
        return 192 + 4*i if i < 16 else 128 + 4*(i - 16)
    LQ = [('D', 0, 0), ('G', 0), ('U', 0), ('D', 0, 1)]
    for ks in range(1, 28):
        LQ += [('G', ks), ('U', ks)]
        if ks % 2 == 1 and (ks + 3)//2 < 14: LQ.append(('D', 0, (ks + 3)//2))
        if ks in (24, 25): LQ.append(('D', 1, ks - 24))
    LQ += [('G', 28), ('U', 28)] + [('D', 1, kp) for kp in range(2, 14)] + [('gb', 0), ('gb', 1)]
    for _ in range(6): issue(LQ.pop(0))
    a('v_bfe_u32 v88, v0, 5, 1')
    a('v_bfe_u32 v89, v0, 2, 2')
    a('v_bfe_u32 v90, v0, 3, 1')
    a('v_bfe_u32 v91, v0, 4, 1')
    a('v_and_b32 v92, 3, v0')
    a('v_lshlrev_b32 v92, 3, v92')
    a('v_lshl_add_u32 v92, v91, 5, v92')
    a('v_lshl_add_u32 v92, v89, 7, v92')
    a('v_lshl_add_u32 v5, v88, 10, v92')
    a('v_lshl_add_u32 v5, v90, 6, v5')
    a('v_xor_b32 v6, 64, v5')
    for _ in range(NF - 6): issue(LQ.pop(0))
    a(f'v_add_u32 v7, {XL}, v5')
    a(f'v_add_u32 v8, {XL}, v6')
    a('v_and_b32 v93, 31, v0')
    a('v_lshlrev_b32 v9, 4, v93')
    a('v_lshl_add_u32 v9, v88, 3, v9')
    a('v_min_u32 v10, 13, v2')
    a('v_mul_u32_u24 v94, 14, v1')
    a(f'v_add_lshl_u32 v10, v10, v94, {FSH}')
    a('v_lshl_add_u32 v11, v88, 9, v92')
    a('v_lshl_add_u32 v11, v1, 11, v11')
    a('v_xor_b32 v94, s12, v90')
    a('v_lshl_add_u32 v11, v94, 6, v11')
    a('s_lshl_b32 s13, s9, 13')
    a('v_add_u32 v11, s13, v11')
    a('s_lshl_b32 s13, s10, 7'); a('s_lshl_b32 s14, s12, 5'); a('s_add_u32 s13, s13, s14')
    a('v_add_u32 v12, s13, v93')
    a('v_mul_u32_u24 v12, 896, v12')
    a('v_lshl_add_u32 v12, v88, 4, v12')
    a('v_lshl_add_u32 v12, v1, 5, v12')
    a('s_lshl_b32 s13, s9, 7')
    a('v_add_u32 v12, s13, v12')
    a('v_lshl_add_u32 v13, v1, 11, v3')
    a('v_lshl_add_u32 v14, v1, 13, v3')
    a('v_lshlrev_b32 v15, 4, v88')
    a('v_lshl_add_u32 v15, v1, 6, v15')
    for j in range(4):
        a(f'v_mov_b32 v{EF+4*j+2}, 0'); a(f'v_mov_b32 v{EF+4*j+3}, 0')
    a('v_mov_b32 v95, 1')
    a('s_mul_i32 s13, s20, 28672')
    a(f's_mul_i32 s27, s9, {2*112*1024}')
    a('s_add_u32 s27, s27, s13')
    a(f's_add_u32 s27, s27, {WD}')
    a(f's_add_u32 s28, s27, {112*1024}')
    a('s_lshl_b32 s14, s10, 2')
    a('s_add_u32 s29, s14, s12')
    a(f's_mul_i32 s29, s29, {112*1024}')
    a('s_add_u32 s29, s29, s13')
    a(f's_add_u32 s29, s29, {HID}')
    a(f's_add_u32 s30, s29, {2*112*1024}')
    a('s_lshl_b32 s31, s10, 11'); a(f's_add_u32 s31, s31, {STA}')
    a('s_lshl_b32 s32, s9, 8'); a(f's_add_u32 s32, s32, {MOD + 5*448*4}')
    a(f's_lshl_b32 s33, s10, {7+FSH}'); a(f's_add_u32 s33, s33, {FLG}')
    a(f's_lshl_b32 s34, s22, {FSH}'); a('s_add_u32 s34, s34, s33')
    a(f's_add_u32 s41, s33, {64 << FSH}')
    a(f's_add_u32 s42, s34, {64 << FSH}')
    a(f's_mul_i32 s35, s14, {112*1024}')
    a('s_lshl_b32 s13, s22, 11')
    a('s_add_u32 s35, s35, s13')
    a(f's_add_u32 s35, s35, {HID}')
    srd(a, 44, 36, 2048*448*2)
    a(f's_mov_b32 s40, {SPIN}')
    XB = 16
    def trread(s, n):
        half, ks = divmod(s, 28)
        jj, second = n >> 1, n & 1
        b = XB + (s % 3)*8 + 4*jj + 2*second
        a(f'ds_read_b64_tr_b16 {v(b,2)}, v{5+2*half+jj} offset:{ks*2048 + 512*second}')
        lg.add(('x', s, n))
    def sync_for(s):
        half, ks = divmod(s, 28)
        if half == 0:
            if ks % 2 == 0: return ('D', 0, ks//2)
        else:
            if ks == 0: return [('D', 1, k) for k in range(2)]
            if ks == 4: return [('D', 1, k) for k in range(5)]
            if ks == 10: return [('D', 1, k) for k in range(14)]
        return None
    retry = []
    def epi_items(half):
        items = []
        for jj in range(2):
            g = 128 + 64*half + 32*jj; u = g + 16
            r2 = EF + 4*(2*half + jj) + 1
            ob = 72 + 8*jj
            for i0 in range(0, 16, 4):
                for i in range(i0, i0+4): items.append(f'v_max_f32 v{g+i}, 0, v{g+i}')
                for i in range(i0, i0+4): items.append(f'v_mul_f32 v{u+i}, v{u+i}, v{r2}')
                for i in range(i0, i0+4): items.append(f'v_mul_f32 v{g+i}, v{g+i}, v{u+i}')
                for i in range(i0, i0+4, 2): items.append(f'v_cvt_pk_bf16_f32 v{ob+i//2}, v{g+i}, v{g+i+1}')
                if i0 % 8 == 4:
                    items.append(('st', half, jj, i0 // 8))
        return items
    def epi_pk(half):
        for jj in range(2):
            g = 128 + 64*half + 32*jj; u = g + 16
            r2 = EF + 4*(2*half + jj)
            ob = 72 + 8*jj
            for i0 in range(0, 16, 8):
                for i in range(i0, i0+8): a(f'v_max_f32 v{g+i}, 0, v{g+i}')
                for i in range(i0, i0+8, 2): a(f'v_pk_mul_f32 {v(u+i,2)}, {v(u+i,2)}, {v(r2,2)} op_sel:[0,1] op_sel_hi:[1,1]')
                for i in range(i0, i0+8, 2): a(f'v_pk_mul_f32 {v(g+i,2)}, {v(g+i,2)}, {v(u+i,2)}')
                for i in range(i0, i0+8, 2): a(f'v_cvt_pk_bf16_f32 v{ob+i//2}, v{g+i}, v{g+i+1}')
                do_item(('st', half, jj, i0 // 8))
    def do_item(it):
        if isinstance(it, str): a(it); return
        if it[0] == 'st':
            _, half, jj, c = it
            if c == 0: a(f's_add_u32 s38, s35, {(2*half+jj)*112*1024}')
            if P.get('x_nost') and half == 0: a('buffer_load_dword v91, v3, s[16:19], s27 offen')
            else: a(f'buffer_store_dwordx4 {v(72+8*jj+4*c,4)}, v3, s[16:19], s38 offen offset:{1024*c} {"" if P.get("x_plain") else "sc1"}')
            vm.add(it)
        else: raise ValueError(it)
    def extra_mfma(half):
        for jj in range(2):
            g = 128 + 64*half + 32*jj
            e = v(EF + 4*(2*half+jj), 4)
            a(f'v_mfma_f32_32x32x16_bf16 {v(g,16)}, {a_(8*28,4)}, {e}, {v(g,16)}')
            a(f'v_mfma_f32_32x32x16_bf16 {v(g+16,16)}, {a_(8*28+4,4)}, {e}, {v(g+16,16)}')
    def set_flag(ph):
        wait(vt=[('st', ph, jj, c) for jj in range(2) for c in range(2)])
        a('s_mov_b64 exec, 1')
        a(f'buffer_store_dword v95, off, s[16:19], s{34+8*ph} sc1')
        a('s_mov_b64 exec, -1')
        vm.add(('F', ph))
    def check_stats():
        wait(vt=[('S', j) for j in range(4)])
        a(f'v_min3_u32 v90, v{EF+1}, v{EF+5}, v{EF+9}')
        a(f'v_min_u32 v90, v90, v{EF+13}')
        a('v_cmp_eq_u32 vcc, 0, v90')
        a('s_cbranch_vccnz kb_rs')
        a.label('kb_rs_ret')
        def blk():
            a.label('kb_rs'); a.hist = []
            a('s_sleep 2')
            for j in range(4):
                a(f'buffer_load_dwordx2 {v(EF+4*j,2)}, v9, s[16:19], s31 offen offset:{512*j} sc1')
            a('s_sub_u32 s40, s40, 1')
            a('s_cbranch_scc1 kb_end')
            a('s_waitcnt vmcnt(0)')
            a(f'v_min3_u32 v90, v{EF+1}, v{EF+5}, v{EF+9}')
            a(f'v_min_u32 v90, v90, v{EF+13}')
            a('v_cmp_eq_u32 vcc, 0, v90')
            a('s_cbranch_vccnz kb_rs')
            a('s_branch kb_rs_ret')
        retry.append(blk)
    def check_poll(ph):
        wait(vt=('P', ph))
        a(f'v_cmp_eq_u32 vcc, 0, v{88+ph}')
        a(f's_cbranch_vccnz kb_rp{ph}')
        a.label(f'kb_rp{ph}_ret')
        def blk():
            a.label(f'kb_rp{ph}'); a.hist = []
            if P.get('SLP', 4): a(f's_sleep {P.get("SLP", 4)}')
            a(f'buffer_load_dword v{88+ph}, v10, s[16:19], s{33+8*ph} offen sc1')
            a('s_sub_u32 s40, s40, 1')
            a('s_cbranch_scc1 kb_end')
            a('s_waitcnt vmcnt(0)')
            a(f'v_cmp_eq_u32 vcc, 0, v{88+ph}')
            a(f's_cbranch_vccnz kb_rp{ph}')
            a(f's_branch kb_rp{ph}_ret')
        retry.append(blk)
    nstamp('pro')
    wait(vt=('D', 0, 0)); a('s_barrier')
    for s in range(2):
        for n in range(4): trread(s, n)
    nstamp('sync0')
    fill = []
    nH = [0]
    PC = P.get('PC', PE + 4)
    for s in range(56):
        half, ks = divmod(s, 28)
        nstamp(f's{s}')
        gaps = [[], [], [], []]
        if s + 2 < 56:
            sy = sync_for(s + 2)
            if sy: gaps[0].append(('sync', sy))
            gaps[0] += [('tr', s+2, 0), ('tr', s+2, 1)]
            gaps[1] += [('tr', s+2, 2), ('tr', s+2, 3)]
        nl = 2 + (s & 1) + (1 if s < P.get('RAMP', 0) else 0)
        lds_ = [LQ.pop(0) for _ in range(min(nl, len(LQ)))]
        if half == 1 and ks >= 1: lds_ += [('W', ks-1, 0), ('W', ks-1, 1)]
        if s == 28 + SL: lds_ += [('S', j) for j in range(4)]
        if s == 28 + PE: lds_.append(('P', 0))
        if s == 28 + PC: check_poll(0); nstamp('pollE')
        if s >= 28 + PC:
            for _ in range(P.get('HR', 1)):
                if nH[0] < 16: lds_.append(('H', 0, nH[0])); nH[0] += 1
        ng = 2 if len(lds_) <= 4 else 3
        for n, t in enumerate(lds_): gaps[4 - ng + n*ng//len(lds_)].append(('ld', t))
        if s == 28 + SA:
            check_stats(); nstamp('stat'); wait(vt=[('G', 28), ('U', 28)]); extra_mfma(0)
            fill = [None]*6 + epi_items(0)
        if s == 28 + FE:
            assert not fill, len(fill)
            gaps[3].append(('flag', 0))
        wait(vt=[('G', ks), ('U', ks)] if half == 0 else None, lt=('x', s, 3))
        b = XB + (s % 3)*8
        for n in range(4):
            jj, mat = n >> 1, n & 1
            acc = 128 + 64*half + 32*jj + 16*mat
            a(f'v_mfma_f32_32x32x16_bf16 {v(acc,16)}, {a_(8*ks+4*mat,4)}, {v(b+4*jj,4)}, {"0" if ks == 0 else v(acc,16)}')
            used = 0
            for it in gaps[n]:
                if it[0] == 'sync': wait(vt=it[1]); a('s_barrier'); used += 2
                elif it[0] == 'tr': trread(it[1], it[2]); used += 1
                elif it[0] == 'ld': issue(it[1]); used += 2
                elif it[0] == 'flag': set_flag(it[1]); used += 4
            while fill and used < P.get('FILL', 5):
                it = fill.pop(0)
                if it is not None and not (P.get('x_nofill') and isinstance(it, str)): do_item(it)
                used += 1
    assert not LQ
    nstamp('T0')
    extra_mfma(1)
    issue(('W', 27, 0)); issue(('W', 27, 1))
    for ph in range(2):
        for q in range(2):
            a(f'ds_read_b64_tr_b16 {v(64+4*ph+2*q,2)}, v11 offset:{1024*q}'); lg.add(('x1', ph, q))
        if ph == 0: a(f'v_add_u32 v11, {XL}, v11')
    if PC >= 28: check_poll(0); nstamp('pollE')
    while nH[0] < HPRE: issue(('H', 0, nH[0])); nH[0] += 1
    epi_pk(1)
    nstamp('epiB')
    ACC2 = 96
    def reduce_out(ph):
        wait(vt=[('gb', 0), ('gb', 1)])
        for qd in range(4):
            for c in range(2):
                a(f'ds_write_b128 v13, {v(ACC2+8*qd+4*c,4)} offset:{qd*8192 + c*1024}')
        a('s_waitcnt lgkmcnt(0)')
        a('s_barrier')
        for sw in range(4):
            for c in range(2):
                a(f'ds_read_b128 {v(16+8*sw+4*c,4)}, v14 offset:{sw*2048 + c*1024}')
        X = 72
        for e in range(4):
            a(f'v_lshlrev_b32 v{X+2*e}, 16, v{64+4*ph+e}')
            a(f'v_and_b32 v{X+2*e+1}, 0xffff0000, v{64+4*ph+e}')
        a('s_waitcnt lgkmcnt(4)')
        for e in range(8): a(f'v_add_f32 v{16+e}, v{16+e}, v{24+e}')
        a('s_waitcnt lgkmcnt(0)')
        for e in range(8): a(f'v_add_f32 v{32+e}, v{32+e}, v{40+e}')
        for e in range(8): a(f'v_add_f32 v{16+e}, v{16+e}, v{32+e}')
        for e in range(0, 8, 2): rb2(a, 16+e, 17+e, 24 + (e >> 1))
        for e in range(8): a(f'v_mul_f32 v{16+e}, v{16+e}, v{GB+e}')
        for e in range(0, 8, 2): rb2(a, 16+e, 17+e, 24 + (e >> 1))
        for e in range(8): a(f'v_add_f32 v{16+e}, v{16+e}, v{X+e}')
        for e in range(4): a(f'v_cvt_pk_bf16_f32 v{80+e}, v{16+2*e}, v{17+2*e}')
        a('v_permlane32_swap_b32 v80, v82')
        a('v_permlane32_swap_b32 v81, v83')
        a(f's_mov_b32 s39, {ph*64*896}')
        a('buffer_store_dwordx4 v[80:83], v12, s[44:47], s39 offen')
        vm.add(('o', ph))
        lg.all_done()
    a(f'v_add_u32 v13, {RED}, v13')
    a(f'v_add_u32 v14, {RED}, v14')
    for i in range(28):
        k = 0
        while nH[0] < 28 and nH[0] < i + 16 and nH[0] < i + P.get('HLA', 14) and k < P.get('HB', 2): issue(('H', 0, nH[0])); nH[0] += 1; k += 1
        nstamp(f'e{i}')
        if i == FS: set_flag(1); nstamp('flagL')
        if i == PL: issue(('P', 1))
        wait(vt=[('H', 0, i), ('W', i, 0), ('W', i, 1)])
        for b in range(2):
            a(f'v_mfma_f32_32x32x16_bf16 {v(ACC2+16*b,16)}, {a_(8*i+4*b,4)}, {v(hreg(0,i),4)}, {"0" if i == 0 else v(ACC2+16*b,16)}')
    nstamp('g2e')
    LPRE = P.get('LPRE', 16)
    if P.get('TWO', 1):
        wait(vt=('P', 1))
        a('v_cmp_eq_u32 vcc, 0, v89')
        a('s_cbranch_vccnz kb_p2')
        so, sd, sh = list(vm.order), vm.done, list(a.hist)
        for i in range(LPRE): issue(('H', 1, i))
        reduce_out(0)
        a('s_branch kb_pm')
        a.label('kb_p2'); a.hist = sh
        vm.order, vm.done = so, sd
        issue(('P', 1, 'b'))
        reduce_out(0)
        wait(vt=('P', 1, 'b'))
        check_poll(1)
        for i in range(LPRE): issue(('H', 1, i))
        a.label('kb_pm'); a.hist = []
        nstamp('redE')
    else:
        reduce_out(0)
        nstamp('redE')
        check_poll(1)
        nstamp('pollL')
        for i in range(LPRE): issue(('H', 1, i))
    nstamp('Hl')
    a(f'v_subrev_u32 v13, {RED}, v13')
    a(f'v_subrev_u32 v14, {RED}, v14')
    for i in range(28):
        nstamp(f'l{i}')
        if i + LPRE < 28: issue(('H', 1, i + LPRE))
        wait(vt=('H', 1, i))
        for b in range(2):
            a(f'v_mfma_f32_32x32x16_bf16 {v(ACC2+16*b,16)}, {a_(8*i+4*b,4)}, {v(hreg(1,i),4)}, {"0" if i == 0 else v(ACC2+16*b,16)}')
    nstamp('g2l')
    reduce_out(1)
    stamp_end(a, kidx)
    for blk in retry: blk()

    a.label('kb_help'); a.hist = []
    St.n = 1
    a('v_lshlrev_b32 v4, 4, v0')
    a('v_and_b32 v5, 7, v0')
    a('v_and_b32 v6, 16, v0')
    a('v_lshlrev_b32 v6, 2, v6')
    a('v_xor_b32 v4, v4, v6')
    a('s_and_b32 s6, s2, 6'); a('s_lshl_b32 s6, s6, 2')
    a('s_lshr_b32 s7, s2, 3'); a('s_lshl_b32 s7, s7, 1')
    a('s_add_u32 s6, s6, s7')
    a('s_and_b32 s7, s2, 1')
    a('s_add_u32 s3, s6, s7')
    a('s_xor_b32 s8, s3, 1')
    a(f's_mul_i32 s21, s3, {XL}')
    a(f's_add_u32 s21, s21, {X1T}')
    a(f's_mul_i32 s23, s8, {XL}')
    a(f's_add_u32 s23, s23, {X1T}')
    a('s_waitcnt lgkmcnt(0)')
    srd(a, 16, 4, WSZ2)
    for i in range(14):
        a(f'buffer_load_dwordx4 {v(64+4*i,4)}, v4, s[16:19], s21 offen')
        if i < 13: a('s_add_u32 s21, s21, 4096')
        if P.get('TOUCH', 1):
            a(f'buffer_load_dwordx4 {v(128+4*i,4)}, v4, s[16:19], s23 offen')
            if i < 13: a('s_add_u32 s23, s23, 4096')
    a('v_bfe_u32 v6, v0, 4, 1')
    a('v_lshlrev_b32 v6, 4, v6')
    a('v_lshl_add_u32 v6, v5, 5, v6')
    a('v_lshrrev_b32 v7, 5, v0')
    a('v_lshl_add_u32 v6, v7, 8, v6')
    a('v_lshlrev_b32 v7, 2, v2')
    a('v_lshlrev_b32 v8, 4, v2')
    a('s_lshl_b32 s22, s3, 10')
    a(f's_add_u32 s22, s22, {STA}')
    S1, S2, T = 16, 24, 32
    for i in range(14):
        a(f's_waitcnt vmcnt({(13-i)*2+1 if P.get("TOUCH", 1) else 13-i})')
        t = T + 8*(i & 1)
        for j in range(4):
            a(f'v_lshlrev_b32 v{t+2*j}, 16, v{64+4*i+j}')
            a(f'v_and_b32 v{t+2*j+1}, 0xffff0000, v{64+4*i+j}')
        for j in range(0, 8, 2):
            if i == 0:
                a(f'v_mov_b32 v{S1+j}, v{t+j}'); a(f'v_mov_b32 v{S1+j+1}, v{t+j+1}')
                a(f'v_pk_mul_f32 {v(S2+j,2)}, {v(t+j,2)}, {v(t+j,2)}')
            else:
                a(f'v_pk_add_f32 {v(S1+j,2)}, {v(S1+j,2)}, {v(t+j,2)}')
                a(f'v_pk_fma_f32 {v(S2+j,2)}, {v(t+j,2)}, {v(t+j,2)}, {v(S2+j,2)}')
    stamp(a)
    for e in range(8): a(f'v_permlane32_swap_b32 v{S1+e}, v{S2+e}')
    for e in range(8): a(f'v_add_f32 v{S1+e}, v{S1+e}, v{S2+e}')
    for e in range(4): a(f'v_permlane16_swap_b32 v{S1+e}, v{S1+4+e}')
    for e in range(4): a(f'v_add_f32 v{S1+e}, v{S1+e}, v{S1+4+e}')
    for e in range(4): a(f'v_add_f32_dpp v{S1+e}, v{S1+e}, v{S1+e} row_ror:8 row_mask:0xf bank_mask:0xf')
    a(f'ds_write_b128 v6, {v(S1,4)}')
    a('s_waitcnt lgkmcnt(0)')
    a('s_barrier')
    a('v_readfirstlane_b32 s20, v1')
    a('s_cmp_lg_u32 s20, 0')
    a('s_cbranch_scc1 kb_end')
    for n in range(8): a(f'ds_read_b32 v{32+n}, v7 offset:{256*n}')
    a('s_waitcnt lgkmcnt(0)')
    a('v_add_f32 v32, v32, v34'); a('v_add_f32 v33, v33, v35')
    a('v_add_f32 v36, v36, v38'); a('v_add_f32 v37, v37, v39')
    a('v_add_f32 v32, v32, v36'); a('v_add_f32 v33, v33, v37')
    a(f'v_mul_f32 v32, {fhex(1.0/448)}, v32')
    a(f'v_mul_f32 v33, {fhex(1.0/448)}, v33')
    a('v_fma_f32 v33, -v32, v32, v33')
    a('v_max_f32 v33, 0, v33')
    rb1(a, 33)
    a(f'v_add_f32 v33, {fhex(1e-5)}, v33')
    rb1(a, 33)
    a('v_sqrt_f32 v33, v33')
    a('v_cvt_pk_bf16_f32 v40, -v32, -v32')
    a('v_cvt_pk_bf16_f32 v42, v33, v33')
    a('v_and_b32 v33, 0xffff0000, v42')
    a('v_rcp_f32 v33, v33')
    a('v_mul_f32 v41, v33, v33')
    a('v_and_b32 v41, 0xffffff7f, v41')
    a('v_or_b32 v41, 1, v41')
    a('v_mov_b32 v43, v41')
    a('buffer_store_dwordx4 v[40:43], v8, s[16:19], s22 offen sc1')
    stamp_end(a, kidx)
    a.label('kb_end')
    a('s_endpgm')
    a.end_kernel(nm, accum=256, denorm=False)
    a.launch(nm, 224 + NH, 256, KB_LDS)

def kp(a):
    nm = 'kp_kernel'
    a.begin_kernel(nm)
    a('s_cmp_ge_u32 s2, 256')
    a('s_cbranch_scc1 kp_end')
    a('s_load_dwordx2 s[4:5], s[0:1], 136')
    a('s_and_b32 s6, s2, 1')
    a('s_lshr_b32 s7, s2, 3')
    a('v_lshlrev_b32 v1, 4, v0')
    HW = 28*2*29*1024
    a(f's_mul_i32 s8, s6, {HW}')
    a(f's_mul_i32 s9, s7, {13*4096}')
    a('s_add_u32 s8, s8, s9')
    a(f's_add_u32 s8, s8, {WP}')
    a(f's_add_u32 s9, s9, {WD}')
    a('s_waitcnt lgkmcnt(0)')
    srd(a, 16, 4, WSZ2)
    n = 0
    for i in range(13):
        if P.get('pfw', 1):
            a(f'buffer_load_dwordx4 {v(4+4*n,4)}, v1, s[16:19], s8 offen'); n += 1
            a('s_add_u32 s8, s8, 4096')
        if P.get('pfd', 1):
            a(f'buffer_load_dwordx4 {v(4+4*n,4)}, v1, s[16:19], s9 offen'); n += 1
            a('s_add_u32 s9, s9, 4096')
    a('s_waitcnt vmcnt(0)')
    a.label('kp_end')
    a('s_endpgm')
    a.end_kernel(nm, denorm=False)
    a.launch(nm, 256, 256, 0)
```

```python
import sys, gen
kw = dict(ks='12b', npf=16, pfn=5, zero=5, xtile=1, g1map='4x7')
for x in sys.argv[2:]:
    k, val = x.split('=')
    kw[k] = int(val) if val.lstrip('-').isdigit() else val
gen.build(sys.argv[1], **kw)
```

```python
from gen import *
import gen
ZR = 0x1310000
STA = ZR
FLG = ZR + 0x8000
WSZ2 = 0x1380000
XL = 57344
RED = 114688
KB_LDS = RED + 32768
NH = 32
SPIN = 100000

class Q:
    def __init__(self, a, name, mx):
        self.a = a; self.name = name; self.mx = mx; self.order = []; self.done = -1
    def add(self, tag): self.order.append(tag)
    def cnt(self, tag):
        idx = max(self.order.index(t) for t in tag) if isinstance(tag, list) else self.order.index(tag)
        if idx <= self.done: return None
        self.done = idx
        n = len(self.order) - 1 - idx
        assert n <= self.mx, (self.name, tag, n)
        return n
    def all_done(self): self.done = len(self.order) - 1

def kb(a, kidx=2):
    SPN = str(P.get('sp', 'pro,sync0,s14,s28,s42,T0,epiB,g2e,redE,pollL,g2l')).split(',')
    def nstamp(n):
        if n in SPN: stamp(a)
    nm = 'kb_kernel'
    FSH = P.get('FSH', 7)
    assert 0x8000 + (16*128 << FSH) <= P['zero']*0x10000
    NF = P.get('NF', 15); SA = P.get('SA', 0); SL = P.get('SL', -6); PE = P.get('PE', 19); FE = P.get('FE', 13)
    FS = P.get('FS', 6); PL = P.get('PL', 22); HPRE = P.get('HPRE', 0)
    a.begin_kernel(nm)
    stamp_begin(a)
    a(f's_cmp_ge_u32 s2, {224 + NH}')
    a('s_cbranch_scc1 kb_end')
    a('s_load_dwordx2 s[4:5], s[0:1], 136')
    a('s_load_dwordx2 s[36:37], s[0:1], 120')
    a('v_lshrrev_b32 v1, 6, v0')
    a('v_and_b32 v2, 63, v0')
    a(f's_cmp_lt_u32 s2, {NH}')
    a('s_cbranch_scc1 kb_help')
    a(f's_sub_u32 s3, s2, {NH}')
    a('s_and_b32 s6, s3, 7')
    a('s_lshr_b32 s7, s3, 3')
    divmod7(a, 7, 8, 9)
    if P['g1map'] == '2x14':
        a('s_lshr_b32 s12, s8, 1'); a('s_lshl_b32 s10, s6, 1'); a('s_add_u32 s10, s10, s12')
        a('s_and_b32 s12, s8, 1')
    else:
        a('s_lshr_b32 s10, s6, 1'); a('s_lshl_b32 s10, s10, 2'); a('s_add_u32 s10, s10, s8')
        a('s_and_b32 s12, s6, 1')
    a('s_mul_i32 s11, s12, 7'); a('s_add_u32 s11, s11, s9')
    a('v_readfirstlane_b32 s20, v1')
    a('v_lshlrev_b32 v3, 4, v2')
    a('v_lshlrev_b32 v4, 4, v0')
    a(f's_mul_i32 s21, s10, {2*XL}')
    a(f's_add_u32 s21, s21, {X1T}')
    a('s_lshl_b32 s22, s11, 2')
    a('s_add_u32 s22, s22, s20')
    a(f's_mul_i32 s23, s22, {2*29*1024}')
    a(f's_add_u32 s23, s23, {WP}')
    a(f's_add_u32 s24, s23, {29*1024}')
    a('s_lshl_b32 s25, s20, 10')
    a('s_waitcnt lgkmcnt(0)')
    srd(a, 16, 4, WSZ2)
    vm = Q(a, 'vm', 63); lg = Q(a, 'lg', 15)
    def wait(vt=None, lt=None):
        nv = vm.cnt(vt) if vt is not None else None
        nl = lg.cnt(lt) if lt is not None else None
        s_ = ''
        if nv is not None: s_ += f' vmcnt({nv})'
        if nl is not None: s_ += f' lgkmcnt({nl})'
        if s_: a('s_waitcnt' + s_)
    GB = 56
    def issue(t):
        k = t[0]
        if k == 'D':
            half, kp = t[1], t[2]
            a(f's_add_u32 m0, s25, {kp*4096 + half*XL}')
            a(f's_add_u32 s26, s21, {kp*4096 + half*XL}')
            a('buffer_load_dwordx4 v4, s[16:19], s26 offen lds')
        elif k == 'G':
            ks = t[1]
            if ks % 4 == 0 and ks: a('s_add_u32 s23, s23, 4096')
            a(f'buffer_load_dwordx4 {a_(8*ks,4)}, v3, s[16:19], s23 offen offset:{(ks%4)*1024}')
        elif k == 'U':
            ks = t[1]
            if ks % 4 == 0 and ks: a('s_add_u32 s24, s24, 4096')
            a(f'buffer_load_dwordx4 {a_(8*ks+4,4)}, v3, s[16:19], s24 offen offset:{(ks%4)*1024}')
        elif k == 'W':
            i, b = t[1], t[2]
            if i % 4 == 0 and i: a(f's_add_u32 s{27+b}, s{27+b}, 4096')
            a(f'buffer_load_dwordx4 {a_(8*i+4*b,4)}, v3, s[16:19], s{27+b} offen offset:{(i%4)*1024}')
        elif k == 'H':
            ph, i = t[1], t[2]
            if i % 4 == 0 and i: a(f's_add_u32 s{29+ph}, s{29+ph}, 4096')
            a(f'buffer_load_dwordx4 {v(hreg(ph,i),4)}, v3, s[16:19], s{29+ph} offen offset:{(i%4)*1024} sc1')
        elif k == 'S':
            a(f'buffer_load_dwordx2 {v(EF+4*t[1],2)}, v9, s[16:19], s31 offen offset:{512*t[1]} sc1')
        elif k == 'gb':
            a(f'buffer_load_dwordx4 {v(GB+4*t[1],4)}, v15, s[16:19], s32 offen offset:{32*t[1]}')
        elif k == 'P':
            if P.get('x_nopoll') and t[1] == 0: a('buffer_load_dword v88, v3, s[16:19], s27 offen')
            else: a(f'buffer_load_dword v{88+t[1]}, v10, s[16:19], s{33+8*t[1]} offen sc1')
        else: raise ValueError(t)
        vm.add(t)
    EF = 40
    def hreg(ph, i):
        if ph == 0: return 128 + 4*(i % 16)
        return 192 + 4*i if i < 16 else 128 + 4*(i - 16)
    LQ = [('D', 0, 0), ('G', 0), ('U', 0), ('D', 0, 1)]
    for ks in range(1, 28):
        LQ += [('G', ks), ('U', ks)]
        if ks % 2 == 1 and (ks + 3)//2 < 14: LQ.append(('D', 0, (ks + 3)//2))
        if ks in (24, 25): LQ.append(('D', 1, ks - 24))
    LQ += [('G', 28), ('U', 28)] + [('D', 1, kp) for kp in range(2, 14)] + [('gb', 0), ('gb', 1)]
    for _ in range(6): issue(LQ.pop(0))
    a('v_bfe_u32 v88, v0, 5, 1')
    a('v_bfe_u32 v89, v0, 2, 2')
    a('v_bfe_u32 v90, v0, 3, 1')
    a('v_bfe_u32 v91, v0, 4, 1')
    a('v_and_b32 v92, 3, v0')
    a('v_lshlrev_b32 v92, 3, v92')
    a('v_lshl_add_u32 v92, v91, 5, v92')
    a('v_lshl_add_u32 v92, v89, 7, v92')
    a('v_lshl_add_u32 v5, v88, 10, v92')
    a('v_lshl_add_u32 v5, v90, 6, v5')
    a('v_xor_b32 v6, 64, v5')
    for _ in range(NF - 6): issue(LQ.pop(0))
    a(f'v_add_u32 v7, {XL}, v5')
    a(f'v_add_u32 v8, {XL}, v6')
    a('v_and_b32 v93, 31, v0')
    a('v_lshlrev_b32 v9, 4, v93')
    a('v_lshl_add_u32 v9, v88, 3, v9')
    a('v_min_u32 v10, 13, v2')
    a('v_mul_u32_u24 v94, 14, v1')
    a(f'v_add_lshl_u32 v10, v10, v94, {FSH}')
    a('v_lshl_add_u32 v11, v88, 9, v92')
    a('v_lshl_add_u32 v11, v1, 11, v11')
    a('v_xor_b32 v94, s12, v90')
    a('v_lshl_add_u32 v11, v94, 6, v11')
    a('s_lshl_b32 s13, s9, 13')
    a('v_add_u32 v11, s13, v11')
    a('s_lshl_b32 s13, s10, 7'); a('s_lshl_b32 s14, s12, 5'); a('s_add_u32 s13, s13, s14')
    a('v_add_u32 v12, s13, v93')
    a('v_mul_u32_u24 v12, 896, v12')
    a('v_lshl_add_u32 v12, v88, 4, v12')
    a('v_lshl_add_u32 v12, v1, 5, v12')
    a('s_lshl_b32 s13, s9, 7')
    a('v_add_u32 v12, s13, v12')
    a('v_lshl_add_u32 v13, v1, 11, v3')
    a('v_lshl_add_u32 v14, v1, 13, v3')
    a('v_lshlrev_b32 v15, 4, v88')
    a('v_lshl_add_u32 v15, v1, 6, v15')
    for j in range(4):
        a(f'v_mov_b32 v{EF+4*j+2}, 0'); a(f'v_mov_b32 v{EF+4*j+3}, 0')
    a('v_mov_b32 v95, 1')
    a('s_mul_i32 s13, s20, 28672')
    a(f's_mul_i32 s27, s9, {2*112*1024}')
    a('s_add_u32 s27, s27, s13')
    a(f's_add_u32 s27, s27, {WD}')
    a(f's_add_u32 s28, s27, {112*1024}')
    a('s_lshl_b32 s14, s10, 2')
    a('s_add_u32 s29, s14, s12')
    a(f's_mul_i32 s29, s29, {112*1024}')
    a('s_add_u32 s29, s29, s13')
    a(f's_add_u32 s29, s29, {HID}')
    a(f's_add_u32 s30, s29, {2*112*1024}')
    a('s_lshl_b32 s31, s10, 11'); a(f's_add_u32 s31, s31, {STA}')
    a('s_lshl_b32 s32, s9, 8'); a(f's_add_u32 s32, s32, {MOD + 5*448*4}')
    a(f's_lshl_b32 s33, s10, {7+FSH}'); a(f's_add_u32 s33, s33, {FLG}')
    a(f's_lshl_b32 s34, s22, {FSH}'); a('s_add_u32 s34, s34, s33')
    a(f's_add_u32 s41, s33, {64 << FSH}')
    a(f's_add_u32 s42, s34, {64 << FSH}')
    a(f's_mul_i32 s35, s14, {112*1024}')
    a('s_lshl_b32 s13, s22, 11')
    a('s_add_u32 s35, s35, s13')
    a(f's_add_u32 s35, s35, {HID}')
    srd(a, 44, 36, 2048*448*2)
    a(f's_mov_b32 s40, {SPIN}')
    XB = 16
    def trread(s, n):
        half, ks = divmod(s, 28)
        jj, second = n >> 1, n & 1
        b = XB + (s % 3)*8 + 4*jj + 2*second
        a(f'ds_read_b64_tr_b16 {v(b,2)}, v{5+2*half+jj} offset:{ks*2048 + 512*second}')
        lg.add(('x', s, n))
    def sync_for(s):
        half, ks = divmod(s, 28)
        if half == 0:
            if ks % 2 == 0: return ('D', 0, ks//2)
        else:
            if ks == 0: return [('D', 1, k) for k in range(2)]
            if ks == 4: return [('D', 1, k) for k in range(5)]
            if ks == 10: return [('D', 1, k) for k in range(14)]
        return None
    retry = []
    def epi_items(half):
        items = []
        for jj in range(2):
            g = 128 + 64*half + 32*jj; u = g + 16
            r2 = EF + 4*(2*half + jj) + 1
            ob = 72 + 8*jj
            for i0 in range(0, 16, 4):
                for i in range(i0, i0+4): items.append(f'v_max_f32 v{g+i}, 0, v{g+i}')
                for i in range(i0, i0+4): items.append(f'v_mul_f32 v{u+i}, v{u+i}, v{r2}')
                for i in range(i0, i0+4): items.append(f'v_mul_f32 v{g+i}, v{g+i}, v{u+i}')
                for i in range(i0, i0+4, 2): items.append(f'v_cvt_pk_bf16_f32 v{ob+i//2}, v{g+i}, v{g+i+1}')
                if i0 % 8 == 4:
                    items.append(('st', half, jj, i0 // 8))
        return items
    def epi_pk(half):
        for jj in range(2):
            g = 128 + 64*half + 32*jj; u = g + 16
            r2 = EF + 4*(2*half + jj)
            ob = 72 + 8*jj
            for i0 in range(0, 16, 8):
                for i in range(i0, i0+8): a(f'v_max_f32 v{g+i}, 0, v{g+i}')
                for i in range(i0, i0+8, 2): a(f'v_pk_mul_f32 {v(u+i,2)}, {v(u+i,2)}, {v(r2,2)} op_sel:[0,1] op_sel_hi:[1,1]')
                for i in range(i0, i0+8, 2): a(f'v_pk_mul_f32 {v(g+i,2)}, {v(g+i,2)}, {v(u+i,2)}')
                for i in range(i0, i0+8, 2): a(f'v_cvt_pk_bf16_f32 v{ob+i//2}, v{g+i}, v{g+i+1}')
                do_item(('st', half, jj, i0 // 8))
    def do_item(it):
        if isinstance(it, str): a(it); return
        if it[0] == 'st':
            _, half, jj, c = it
            if c == 0: a(f's_add_u32 s38, s35, {(2*half+jj)*112*1024}')
            if P.get('x_nost') and half == 0: a('buffer_load_dword v91, v3, s[16:19], s27 offen')
            else: a(f'buffer_store_dwordx4 {v(72+8*jj+4*c,4)}, v3, s[16:19], s38 offen offset:{1024*c} {"" if P.get("x_plain") else "sc1"}')
            vm.add(it)
        else: raise ValueError(it)
    def extra_mfma(half):
        for jj in range(2):
            g = 128 + 64*half + 32*jj
            e = v(EF + 4*(2*half+jj), 4)
            a(f'v_mfma_f32_32x32x16_bf16 {v(g,16)}, {a_(8*28,4)}, {e}, {v(g,16)}')
            a(f'v_mfma_f32_32x32x16_bf16 {v(g+16,16)}, {a_(8*28+4,4)}, {e}, {v(g+16,16)}')
    def set_flag(ph):
        wait(vt=[('st', ph, jj, c) for jj in range(2) for c in range(2)])
        a('s_mov_b64 exec, 1')
        a(f'buffer_store_dword v95, off, s[16:19], s{34+8*ph} sc1')
        a('s_mov_b64 exec, -1')
        vm.add(('F', ph))
    def check_stats():
        wait(vt=[('S', j) for j in range(4)])
        a(f'v_min3_u32 v90, v{EF+1}, v{EF+5}, v{EF+9}')
        a(f'v_min_u32 v90, v90, v{EF+13}')
        a('v_cmp_eq_u32 vcc, 0, v90')
        a('s_cbranch_vccnz kb_rs')
        a.label('kb_rs_ret')
        def blk():
            a.label('kb_rs'); a.hist = []
            a('s_sleep 2')
            for j in range(4):
                a(f'buffer_load_dwordx2 {v(EF+4*j,2)}, v9, s[16:19], s31 offen offset:{512*j} sc1')
            a('s_sub_u32 s40, s40, 1')
            a('s_cbranch_scc1 kb_end')
            a('s_waitcnt vmcnt(0)')
            a(f'v_min3_u32 v90, v{EF+1}, v{EF+5}, v{EF+9}')
            a(f'v_min_u32 v90, v90, v{EF+13}')
            a('v_cmp_eq_u32 vcc, 0, v90')
            a('s_cbranch_vccnz kb_rs')
            a('s_branch kb_rs_ret')
        retry.append(blk)
    def check_poll(ph):
        wait(vt=('P', ph))
        a(f'v_cmp_eq_u32 vcc, 0, v{88+ph}')
        a(f's_cbranch_vccnz kb_rp{ph}')
        a.label(f'kb_rp{ph}_ret')
        def blk():
            a.label(f'kb_rp{ph}'); a.hist = []
            if P.get('SLP', 4): a(f's_sleep {P.get("SLP", 4)}')
            a(f'buffer_load_dword v{88+ph}, v10, s[16:19], s{33+8*ph} offen sc1')
            a('s_sub_u32 s40, s40, 1')
            a('s_cbranch_scc1 kb_end')
            a('s_waitcnt vmcnt(0)')
            a(f'v_cmp_eq_u32 vcc, 0, v{88+ph}')
            a(f's_cbranch_vccnz kb_rp{ph}')
            a(f's_branch kb_rp{ph}_ret')
        retry.append(blk)
    nstamp('pro')
    wait(vt=('D', 0, 0)); a('s_barrier')
    for s in range(2):
        for n in range(4): trread(s, n)
    nstamp('sync0')
    fill = []
    nH = [0]
    PC = P.get('PC', PE + 4)
    for s in range(56):
        half, ks = divmod(s, 28)
        nstamp(f's{s}')
        gaps = [[], [], [], []]
        if s + 2 < 56:
            sy = sync_for(s + 2)
            if sy: gaps[0].append(('sync', sy))
            gaps[0] += [('tr', s+2, 0), ('tr', s+2, 1)]
            gaps[1] += [('tr', s+2, 2), ('tr', s+2, 3)]
        nl = 2 + (s & 1) + (1 if s < P.get('RAMP', 0) else 0)
        lds_ = [LQ.pop(0) for _ in range(min(nl, len(LQ)))]
        if half == 1 and ks >= 1: lds_ += [('W', ks-1, 0), ('W', ks-1, 1)]
        if s == 28 + SL: lds_ += [('S', j) for j in range(4)]
        if s == 28 + PE: lds_.append(('P', 0))
        if s == 28 + PC: check_poll(0); nstamp('pollE')
        if s >= 28 + PC:
            for _ in range(P.get('HR', 1)):
                if nH[0] < 16: lds_.append(('H', 0, nH[0])); nH[0] += 1
        ng = 2 if len(lds_) <= 4 else 3
        for n, t in enumerate(lds_): gaps[4 - ng + n*ng//len(lds_)].append(('ld', t))
        if s == 28 + SA:
            check_stats(); nstamp('stat'); wait(vt=[('G', 28), ('U', 28)]); extra_mfma(0)
            fill = [None]*6 + epi_items(0)
        if s == 28 + FE:
            assert not fill, len(fill)
            gaps[3].append(('flag', 0))
        wait(vt=[('G', ks), ('U', ks)] if half == 0 else None, lt=('x', s, 3))
        b = XB + (s % 3)*8
        for n in range(4):
            jj, mat = n >> 1, n & 1
            acc = 128 + 64*half + 32*jj + 16*mat
            a(f'v_mfma_f32_32x32x16_bf16 {v(acc,16)}, {a_(8*ks+4*mat,4)}, {v(b+4*jj,4)}, {"0" if ks == 0 else v(acc,16)}')
            used = 0
            for it in gaps[n]:
                if it[0] == 'sync': wait(vt=it[1]); a('s_barrier'); used += 2
                elif it[0] == 'tr': trread(it[1], it[2]); used += 1
                elif it[0] == 'ld': issue(it[1]); used += 2
                elif it[0] == 'flag': set_flag(it[1]); used += 4
            while fill and used < P.get('FILL', 5):
                it = fill.pop(0)
                if it is not None and not (P.get('x_nofill') and isinstance(it, str)): do_item(it)
                used += 1
    assert not LQ
    nstamp('T0')
    extra_mfma(1)
    issue(('W', 27, 0)); issue(('W', 27, 1))
    for ph in range(2):
        for q in range(2):
            a(f'ds_read_b64_tr_b16 {v(64+4*ph+2*q,2)}, v11 offset:{1024*q}'); lg.add(('x1', ph, q))
        if ph == 0: a(f'v_add_u32 v11, {XL}, v11')
    if PC >= 28: check_poll(0); nstamp('pollE')
    while nH[0] < HPRE: issue(('H', 0, nH[0])); nH[0] += 1
    epi_pk(1)
    nstamp('epiB')
    ACC2 = 96
    def reduce_out(ph):
        wait(vt=[('gb', 0), ('gb', 1)])
        for qd in range(4):
            for c in range(2):
                a(f'ds_write_b128 v13, {v(ACC2+8*qd+4*c,4)} offset:{qd*8192 + c*1024}')
        a('s_waitcnt lgkmcnt(0)')
        a('s_barrier')
        for sw in range(4):
            for c in range(2):
                a(f'ds_read_b128 {v(16+8*sw+4*c,4)}, v14 offset:{sw*2048 + c*1024}')
        X = 72
        for e in range(4):
            a(f'v_lshlrev_b32 v{X+2*e}, 16, v{64+4*ph+e}')
            a(f'v_and_b32 v{X+2*e+1}, 0xffff0000, v{64+4*ph+e}')
        a('s_waitcnt lgkmcnt(4)')
        for e in range(8): a(f'v_add_f32 v{16+e}, v{16+e}, v{24+e}')
        a('s_waitcnt lgkmcnt(0)')
        for e in range(8): a(f'v_add_f32 v{32+e}, v{32+e}, v{40+e}')
        for e in range(8): a(f'v_add_f32 v{16+e}, v{16+e}, v{32+e}')
        for e in range(0, 8, 2): rb2(a, 16+e, 17+e, 24 + (e >> 1))
        for e in range(8): a(f'v_mul_f32 v{16+e}, v{16+e}, v{GB+e}')
        for e in range(0, 8, 2): rb2(a, 16+e, 17+e, 24 + (e >> 1))
        for e in range(8): a(f'v_add_f32 v{16+e}, v{16+e}, v{X+e}')
        for e in range(4): a(f'v_cvt_pk_bf16_f32 v{80+e}, v{16+2*e}, v{17+2*e}')
        a('v_permlane32_swap_b32 v80, v82')
        a('v_permlane32_swap_b32 v81, v83')
        a(f's_mov_b32 s39, {ph*64*896}')
        a('buffer_store_dwordx4 v[80:83], v12, s[44:47], s39 offen')
        vm.add(('o', ph))
        lg.all_done()
    a(f'v_add_u32 v13, {RED}, v13')
    a(f'v_add_u32 v14, {RED}, v14')
    for i in range(28):
        k = 0
        while nH[0] < 28 and nH[0] < i + 16 and nH[0] < i + P.get('HLA', 14) and k < P.get('HB', 2): issue(('H', 0, nH[0])); nH[0] += 1; k += 1
        nstamp(f'e{i}')
        if i == FS: set_flag(1); nstamp('flagL')
        if i == PL: issue(('P', 1))
        wait(vt=[('H', 0, i), ('W', i, 0), ('W', i, 1)])
        for b in range(2):
            a(f'v_mfma_f32_32x32x16_bf16 {v(ACC2+16*b,16)}, {a_(8*i+4*b,4)}, {v(hreg(0,i),4)}, {"0" if i == 0 else v(ACC2+16*b,16)}')
    nstamp('g2e')
    LPRE = P.get('LPRE', 16)
    if P.get('TWO', 1):
        wait(vt=('P', 1))
        a('v_cmp_eq_u32 vcc, 0, v89')
        a('s_cbranch_vccnz kb_p2')
        so, sd, sh = list(vm.order), vm.done, list(a.hist)
        for i in range(LPRE): issue(('H', 1, i))
        reduce_out(0)
        a('s_branch kb_pm')
        a.label('kb_p2'); a.hist = sh
        vm.order, vm.done = so, sd
        issue(('P', 1, 'b'))
        reduce_out(0)
        wait(vt=('P', 1, 'b'))
        check_poll(1)
        for i in range(LPRE): issue(('H', 1, i))
        a.label('kb_pm'); a.hist = []
        nstamp('redE')
    else:
        reduce_out(0)
        nstamp('redE')
        check_poll(1)
        nstamp('pollL')
        for i in range(LPRE): issue(('H', 1, i))
    nstamp('Hl')
    a(f'v_subrev_u32 v13, {RED}, v13')
    a(f'v_subrev_u32 v14, {RED}, v14')
    for i in range(28):
        nstamp(f'l{i}')
        if i + LPRE < 28: issue(('H', 1, i + LPRE))
        wait(vt=('H', 1, i))
        for b in range(2):
            a(f'v_mfma_f32_32x32x16_bf16 {v(ACC2+16*b,16)}, {a_(8*i+4*b,4)}, {v(hreg(1,i),4)}, {"0" if i == 0 else v(ACC2+16*b,16)}')
    nstamp('g2l')
    reduce_out(1)
    stamp_end(a, kidx)
    for blk in retry: blk()

    a.label('kb_help'); a.hist = []
    St.n = 1
    a('v_lshlrev_b32 v4, 4, v0')
    a('v_and_b32 v5, 7, v0')
    a('v_and_b32 v6, 16, v0')
    a('v_lshlrev_b32 v6, 2, v6')
    a('v_xor_b32 v4, v4, v6')
    a('s_and_b32 s6, s2, 6'); a('s_lshl_b32 s6, s6, 2')
    a('s_lshr_b32 s7, s2, 3'); a('s_lshl_b32 s7, s7, 1')
    a('s_add_u32 s6, s6, s7')
    a('s_and_b32 s7, s2, 1')
    a('s_add_u32 s3, s6, s7')
    a('s_xor_b32 s8, s3, 1')
    a(f's_mul_i32 s21, s3, {XL}')
    a(f's_add_u32 s21, s21, {X1T}')
    a(f's_mul_i32 s23, s8, {XL}')
    a(f's_add_u32 s23, s23, {X1T}')
    a('s_waitcnt lgkmcnt(0)')
    srd(a, 16, 4, WSZ2)
    for i in range(14):
        a(f'buffer_load_dwordx4 {v(64+4*i,4)}, v4, s[16:19], s21 offen')
        if i < 13: a('s_add_u32 s21, s21, 4096')
        if P.get('TOUCH', 1):
            a(f'buffer_load_dwordx4 {v(128+4*i,4)}, v4, s[16:19], s23 offen')
            if i < 13: a('s_add_u32 s23, s23, 4096')
    a('v_bfe_u32 v6, v0, 4, 1')
    a('v_lshlrev_b32 v6, 4, v6')
    a('v_lshl_add_u32 v6, v5, 5, v6')
    a('v_lshrrev_b32 v7, 5, v0')
    a('v_lshl_add_u32 v6, v7, 8, v6')
    a('v_lshlrev_b32 v7, 2, v2')
    a('v_lshlrev_b32 v8, 4, v2')
    a('s_lshl_b32 s22, s3, 10')
    a(f's_add_u32 s22, s22, {STA}')
    S1, S2, T = 16, 24, 32
    for i in range(14):
        a(f's_waitcnt vmcnt({(13-i)*2+1 if P.get("TOUCH", 1) else 13-i})')
        t = T + 8*(i & 1)
        for j in range(4):
            a(f'v_lshlrev_b32 v{t+2*j}, 16, v{64+4*i+j}')
            a(f'v_and_b32 v{t+2*j+1}, 0xffff0000, v{64+4*i+j}')
        for j in range(0, 8, 2):
            if i == 0:
                a(f'v_mov_b32 v{S1+j}, v{t+j}'); a(f'v_mov_b32 v{S1+j+1}, v{t+j+1}')
                a(f'v_pk_mul_f32 {v(S2+j,2)}, {v(t+j,2)}, {v(t+j,2)}')
            else:
                a(f'v_pk_add_f32 {v(S1+j,2)}, {v(S1+j,2)}, {v(t+j,2)}')
                a(f'v_pk_fma_f32 {v(S2+j,2)}, {v(t+j,2)}, {v(t+j,2)}, {v(S2+j,2)}')
    stamp(a)
    for e in range(8): a(f'v_permlane32_swap_b32 v{S1+e}, v{S2+e}')
    for e in range(8): a(f'v_add_f32 v{S1+e}, v{S1+e}, v{S2+e}')
    for e in range(4): a(f'v_permlane16_swap_b32 v{S1+e}, v{S1+4+e}')
    for e in range(4): a(f'v_add_f32 v{S1+e}, v{S1+e}, v{S1+4+e}')
    for e in range(4): a(f'v_add_f32_dpp v{S1+e}, v{S1+e}, v{S1+e} row_ror:8 row_mask:0xf bank_mask:0xf')
    a(f'ds_write_b128 v6, {v(S1,4)}')
    a('s_waitcnt lgkmcnt(0)')
    a('s_barrier')
    a('v_readfirstlane_b32 s20, v1')
    a('s_cmp_lg_u32 s20, 0')
    a('s_cbranch_scc1 kb_end')
    for n in range(8): a(f'ds_read_b32 v{32+n}, v7 offset:{256*n}')
    a('s_waitcnt lgkmcnt(0)')
    a('v_add_f32 v32, v32, v34'); a('v_add_f32 v33, v33, v35')
    a('v_add_f32 v36, v36, v38'); a('v_add_f32 v37, v37, v39')
    a('v_add_f32 v32, v32, v36'); a('v_add_f32 v33, v33, v37')
    a(f'v_mul_f32 v32, {fhex(1.0/448)}, v32')
    a(f'v_mul_f32 v33, {fhex(1.0/448)}, v33')
    a('v_fma_f32 v33, -v32, v32, v33')
    a('v_max_f32 v33, 0, v33')
    rb1(a, 33)
    a(f'v_add_f32 v33, {fhex(1e-5)}, v33')
    rb1(a, 33)
    a('v_sqrt_f32 v33, v33')
    a('v_cvt_pk_bf16_f32 v40, -v32, -v32')
    a('v_cvt_pk_bf16_f32 v42, v33, v33')
    a('v_and_b32 v33, 0xffff0000, v42')
    a('v_rcp_f32 v33, v33')
    a('v_mul_f32 v41, v33, v33')
    a('v_and_b32 v41, 0xffffff7f, v41')
    a('v_or_b32 v41, 1, v41')
    a('v_mov_b32 v43, v41')
    a('buffer_store_dwordx4 v[40:43], v8, s[16:19], s22 offen sc1')
    stamp_end(a, kidx)
    a.label('kb_end')
    a('s_endpgm')
    a.end_kernel(nm, accum=256, denorm=False)
    a.launch(nm, 224 + NH, 256, KB_LDS)

def kp(a):
    nm = 'kp_kernel'
    a.begin_kernel(nm)
    a('s_cmp_ge_u32 s2, 256')
    a('s_cbranch_scc1 kp_end')
    a('s_load_dwordx2 s[4:5], s[0:1], 136')
    a('s_and_b32 s6, s2, 1')
    a('s_lshr_b32 s7, s2, 3')
    a('v_lshlrev_b32 v1, 4, v0')
    HW = 28*2*29*1024
    a(f's_mul_i32 s8, s6, {HW}')
    a(f's_mul_i32 s9, s7, {13*4096}')
    a('s_add_u32 s8, s8, s9')
    a(f's_add_u32 s8, s8, {WP}')
    a(f's_add_u32 s9, s9, {WD}')
    a('s_waitcnt lgkmcnt(0)')
    srd(a, 16, 4, WSZ2)
    n = 0
    for i in range(13):
        if P.get('pfw', 1):
            a(f'buffer_load_dwordx4 {v(4+4*n,4)}, v1, s[16:19], s8 offen'); n += 1
            a('s_add_u32 s8, s8, 4096')
        if P.get('pfd', 1):
            a(f'buffer_load_dwordx4 {v(4+4*n,4)}, v1, s[16:19], s9 offen'); n += 1
            a('s_add_u32 s9, s9, 4096')
    a('s_waitcnt vmcnt(0)')
    a.label('kp_end')
    a('s_endpgm')
    a.end_kernel(nm, denorm=False)
    a.launch(nm, 256, 256, 0)

def kz(a):
    nm = 'kz_kernel'
    a.begin_kernel(nm)
    a('s_cmp_ge_u32 s2, 1')
    a('s_cbranch_scc1 kz_end')
    a('s_memrealtime s[10:11]')
    a('s_load_dwordx2 s[4:5], s[0:1], 128')
    a('s_waitcnt lgkmcnt(0)')
    a('s_load_dwordx16 s[16:31], s[4:5], 0')
    a('s_waitcnt lgkmcnt(0)')
    def val(spec, dst):
        k = int(spec[1])
        if spec[0] == 's': a(f's_not_b32 s{dst}, s{16+4*k}')
        elif spec[0] == 'e': a(f's_mov_b32 s{dst}, s{16+4*k+1}')
        else: a(f's_mov_b32 s{dst}, s10')
    lo, hi = P['zi'].split('-')
    val(lo, 6); val(hi, 7)
    a('s_sub_u32 s6, s7, s6')
    a('s_min_u32 s6, s6, 5000')
    a(f's_mul_i32 s6, s6, {P.get("zm", 4)}')
    a.label('kz_loop')
    a('s_memrealtime s[12:13]')
    a('s_waitcnt lgkmcnt(0)')
    a('s_sub_u32 s8, s12, s10')
    a('s_cmp_lt_u32 s8, s6')
    a('s_cbranch_scc1 kz_loop')
    a.label('kz_end')
    a('s_endpgm')
    a.end_kernel(nm, denorm=False)
    a.launch(nm, 1, 64, 0)
```

```python
from gen import *
import gen, struct
WSZ2 = 0x13C0000
ZR = 0x1310000
STA1 = 0x1360000
MODP = 0x1380000
XT = 0
KA_LDS = 40960
SPIN = 200000
UB = 33280
FT = 34816

X1U = 0x380000
def rb1(a, r): a(f'v_cvt_pk_bf16_f32 v{r}, 0, v{r}')
def rb2(a, r0, r1, t=None): rb1(a, r0); rb1(a, r1)

def ka(a, kidx=0):
    nm = 'ka_kernel'
    NPF = 16
    B_LN, B_MOD, B_CV, TOT = 16, 144, 256, 704
    NQ = 5
    WSC = ['', 'sc1', 'nt', 'sc0 sc1'][P.get('WSC', 1)]; XSC = ['', 'sc1', 'nt', 'sc0 sc1'][P.get('XSC', 1)]
    a.begin_kernel(nm)
    stamp_begin(a)
    a(f's_cmp_ge_u32 s2, {TOT}')
    a('s_cbranch_scc1 ka_end')
    a('s_load_dwordx2 s[4:5], s[0:1], 136')
    a('s_load_dwordx2 s[28:29], s[0:1], 128')
    a(f's_cmp_ge_u32 s2, {B_CV}')
    a('s_cbranch_scc1 ka_cv')
    a(f's_cmp_ge_u32 s2, {B_MOD}')
    a('s_cbranch_scc1 ka_mod')
    a(f's_cmp_ge_u32 s2, {B_LN}')
    a('s_cbranch_scc1 ka_ln')
    retry = []
    def nonce_ld(vr, vz):
        a(f'global_load_dword v{vr}, v{vz}, s[28:29] sc1')
    def nonce_get(vr, vz, sd, tag):
        a(f'v_readfirstlane_b32 s{sd}, v{vr}')
        a(f's_cmp_eq_u32 s{sd}, 0')
        a(f's_cbranch_scc1 ka_rn_{tag}')
        a.label(f'ka_rn_{tag}_ret')
        def blk():
            a.label(f'ka_rn_{tag}'); a.hist = []
            a(f's_mov_b32 s30, {SPIN}')
            a.label(f'ka_rn_{tag}_l')
            a('s_sleep 2')
            nonce_ld(vr, vz)
            a('s_sub_u32 s30, s30, 1')
            a('s_cbranch_scc1 ka_end')
            a('s_waitcnt vmcnt(0)')
            a(f'v_readfirstlane_b32 s{sd}, v{vr}')
            a(f's_cmp_eq_u32 s{sd}, 0')
            a(f's_cbranch_scc1 ka_rn_{tag}_l')
            a(f's_branch ka_rn_{tag}_ret')
        retry.append(blk)
    a('s_cmp_lg_u32 s2, 0')
    a('s_cbranch_scc1 ka_pf')
    a('s_memrealtime s[10:11]')
    a('v_mov_b32 v2, 0')
    a('v_cmp_eq_u32 vcc, 0, v0')
    a('s_waitcnt lgkmcnt(0)')
    a('s_or_b32 s10, s10, 1')
    a('v_mov_b32 v1, s10')
    a('s_and_saveexec_b64 s[12:13], vcc')
    a('global_store_dword v2, v1, s[28:29] sc1')
    a('s_mov_b64 exec, s[12:13]')
    a.label('ka_pf'); a.hist = []
    parts = NPF // 8
    a('s_getpc_b64 s[8:9]')
    a.label('ka_pf_pc')
    a('s_sub_u32 s8, s8, ka_pf_pc-ka_kernel')
    a('s_subb_u32 s9, s9, 0')
    a('s_lshr_b32 s3, s2, 3')
    a('s_lshl_b32 s3, s3, 12')
    a('v_lshl_add_u32 v1, v0, 4, s3')
    a('s_mov_b32 s6, code_end-ka_kernel-16')
    for i in range(P.get('pfn', 5)):
        a(f'v_min_u32 v2, s6, v1')
        a(f'global_load_dwordx4 {v(4+4*i,4)}, v2, s[8:9]')
        a(f'v_add_u32 v1, {4096*parts}, v1')
    for i in range(4): a(f'v_mov_b32 v{100+i}, 0')
    a('s_lshl_b32 s3, s2, 12')
    a(f's_add_u32 s3, s3, {ZR}')
    a('v_lshl_add_u32 v3, v0, 4, s3')
    a('s_waitcnt lgkmcnt(0)')
    for i in range(P['zero']):
        a(f'global_store_dwordx4 v3, v[100:103], s[4:5] {WSC}')
        a('v_add_u32 v3, 0x10000, v3')
    a('s_waitcnt vmcnt(0)')
    a('s_endpgm')

    a.label('ka_ln'); a.hist = []
    St.n = 1
    a('s_load_dwordx2 s[8:9], s[0:1], 0')
    a('s_load_dwordx4 s[36:39], s[0:1], 80')
    a(f's_setprio {P.get("PLN", 3)}')
    a(f's_sub_u32 s3, s2, {B_LN}')
    a('s_lshl_b32 s6, s3, 4')
    a('v_lshrrev_b32 v1, 4, v0')
    a('v_and_b32 v2, 15, v0')
    a('v_add_u32 v3, s6, v1')
    a('v_mul_u32_u24 v3, 896, v3')
    a('v_lshl_add_u32 v3, v2, 3, v3')
    a('s_waitcnt lgkmcnt(0)')
    for j in range(7):
        a(f'global_load_dwordx2 {v(10+2*j,2)}, v3, s[8:9] offset:{128*j}')
    a('v_mul_u32_u24 v4, 960, v1')
    a('v_lshl_add_u32 v4, v2, 3, v4')
    a('v_lshrrev_b32 v5, 6, v0')
    a('v_bfe_u32 v6, v0, 5, 1')
    a('v_bfe_u32 v7, v0, 2, 2')
    a('v_lshl_add_u32 v7, v6, 3, v7')
    a('v_mul_u32_u24 v7, 960, v7')
    a('v_and_b32 v8, 3, v0')
    a('v_lshl_add_u32 v7, v8, 3, v7')
    a('v_bfe_u32 v8, v0, 4, 1')
    a('v_lshl_add_u32 v7, v8, 5, v7')
    a('v_lshl_add_u32 v7, v5, 6, v7')
    a('v_and_b32 v8, 31, v0')
    a('v_lshlrev_b32 v8, 5, v8')
    a('v_lshl_add_u32 v8, v6, 4, v8')
    a('v_lshl_add_u32 v8, v5, 10, v8')
    a('v_readfirstlane_b32 s24, v5')
    a('v_mov_b32 v9, 0')
    a('s_mul_i32 s7, s3, 14336')
    a('s_lshl_b32 s16, s3, 7')
    a(f's_add_u32 s16, s16, {STA1}')
    a('v_lshrrev_b32 v61, 5, v0')
    a('v_lshlrev_b32 v61, 4, v61')
    a('v_and_b32 v62, 7, v0')
    a('v_lshlrev_b32 v62, 4, v62')
    srd(a, 12, 4, WSZ2)
    XV = 32
    stamp(a)
    for j in range(7):
        a(f's_waitcnt vmcnt({6-j})')
        a(f'ds_write_b64 v4, {v(10+2*j,2)} offset:{128*j}')
    stamp(a)
    nonce_ld(60, 9)
    def unp(j):
        for e2 in range(2):
            a(f'v_lshlrev_b32 v{XV+4*j+2*e2}, 16, v{10+2*j+e2}')
            a(f'v_and_b32 v{XV+4*j+2*e2+1}, 0xffff0000, v{10+2*j+e2}')
        if j == 1:
            a(f'v_pk_add_f32 v[24:25], {v(XV,2)}, {v(XV+4,2)}')
            a(f'v_pk_add_f32 v[26:27], {v(XV+2,2)}, {v(XV+6,2)}')
        elif j > 1:
            a(f'v_pk_add_f32 v[24:25], v[24:25], {v(XV+4*j,2)}')
            a(f'v_pk_add_f32 v[26:27], v[26:27], {v(XV+4*j+2,2)}')
    unp(0)
    a('s_waitcnt lgkmcnt(0)')
    a('s_barrier')
    TR = 96
    for p in range(4):
        for q in range(2):
            a(f'ds_read_b64_tr_b16 {v(TR+4*p+2*q,2)}, v7 offset:{256*p + 3840*q}')
    unp(1); unp(2)
    for p in range(4):
        a(f's_waitcnt lgkmcnt({6-2*p})')
        if p == 3:
            a('s_cmp_ge_u32 s24, 2')
            a('s_cbranch_scc1 ka_ln_s3')
        a(f'buffer_store_dwordx4 {v(TR+4*p,4)}, v8, s[12:15], s7 offen sc1')
        if p < 3: a('s_add_u32 s7, s7, 4096')
    a.label('ka_ln_s3')
    stamp(a)
    for j in range(3, 7): unp(j)
    a('v_pk_add_f32 v[24:25], v[24:25], v[26:27]')
    a('v_add_f32 v24, v24, v25')
    def allred16(r):
        for m in ('quad_perm:[1,0,3,2]', 'quad_perm:[2,3,0,1]', 'row_half_mirror', 'row_mirror'):
            a(f'v_add_f32_dpp v{r}, v{r}, v{r} {m} row_mask:0xf bank_mask:0xf')
    allred16(24)
    a(f'v_mul_f32 v24, {fhex(1.0/448)}, v24')
    for i in range(0, 28, 2):
        a(f'v_pk_add_f32 {v(64+i,2)}, {v(XV+i,2)}, v[24:25] op_sel_hi:[1,0] neg_lo:[0,1] neg_hi:[0,1]')
    a(f'v_pk_mul_f32 v[26:27], v[64:65], v[64:65]')
    a(f'v_pk_mul_f32 v[28:29], v[66:67], v[66:67]')
    for i in range(4, 28, 2):
        r = 26 + (i & 2)
        a(f'v_pk_fma_f32 {v(r,2)}, {v(64+i,2)}, {v(64+i,2)}, {v(r,2)}')
    a('v_pk_add_f32 v[26:27], v[26:27], v[28:29]')
    a('v_add_f32 v26, v26, v27')
    allred16(26)
    a(f'v_mul_f32 v26, {fhex(1.0/448)}, v26')
    rb1(a, 26)
    a(f'v_add_f32 v26, {fhex(1e-5)}, v26')
    rb1(a, 26)
    a('v_sqrt_f32 v26, v26')
    a('v_mov_b32 v25, v24')
    rb1(a, 26)
    a('v_rcp_f32 v30, v26')
    a('v_permlane16_swap_b32 v24, v25')
    a('v_mov_b32 v31, v30')
    a('v_cvt_pk_bf16_f32 v29, v24, v25')
    a('v_permlane16_swap_b32 v30, v31')
    a('ds_write_b128 v61, v[28:31] offset:32768')
    a('v_bfe_u32 v1, v0, 3, 3')
    a('v_mul_u32_u24 v3, 3584, v1')
    a('v_and_b32 v2, 7, v0')
    a('v_bfe_u32 v1, v0, 4, 1')
    a('v_lshlrev_b32 v1, 2, v1')
    a('v_xor_b32 v2, v2, v1')
    a('v_lshl_add_u32 v3, v2, 4, v3')
    a('s_bfe_u32 s25, s3, 0x10001')
    a('s_lshr_b32 s26, s3, 2')
    a('s_lshl_b32 s6, s25, 2'); a('s_add_u32 s6, s6, s24')
    a(f's_mul_i32 s6, s6, {56*3584}')
    a('s_lshl_b32 s27, s26, 7'); a('s_add_u32 s6, s6, s27')
    a('s_mul_i32 s27, s24, 7168')
    a('s_bitcmp1_b32 s3, 0')
    a('s_cselect_b32 s40, s38, s36')
    a('s_cselect_b32 s41, s39, s37')
    a(f's_mov_b32 s42, {448*1792*2}')
    a('s_mov_b32 s43, 0x20000')
    a('v_cmp_gt_u32 vcc, 8, v0')
    a('s_waitcnt lgkmcnt(0)')
    a('s_barrier')
    a('ds_read_b128 v[28:31], v62 offset:32768')
    stamp(a)
    a('s_waitcnt vmcnt(0)')
    nonce_get(60, 9, 34, 'ln')
    a('s_waitcnt lgkmcnt(0)')
    a('v_mov_b32 v28, s34')
    stamp(a)
    a('s_barrier')
    a('s_and_saveexec_b64 s[18:19], vcc')
    a('buffer_store_dwordx4 v[28:31], v62, s[12:15], s16 offen sc1')
    a('s_mov_b64 exec, s[18:19]')
    if P.get('x_pub'):
        n0 = St.n
        stamp_end(a, kidx)
        St.n = n0
    a(f's_setprio {P.get("PPP", 0)}')
    a('s_cmp_gt_u32 s3, 112')
    a('s_cbranch_scc1 ka_end')
    VT = 28672
    a('v_min_u32 v4, 223, v0')
    a('v_lshlrev_b32 v5, 2, v4')
    a('v_lshlrev_b32 v4, 4, v4')
    a(f's_mov_b32 s20, {MODP + 2240*8}')
    a('s_cmp_eq_u32 s3, 112')
    a('s_cbranch_scc1 ka_pp_g')
    for i in range(7):
        a(f's_add_u32 m0, s27, {1024*i}')
        a('buffer_load_dwordx4 v3, s[40:43], s6 offen lds')
        if i < 6: a(f's_add_u32 s6, s6, {8*3584}')
    a('v_cmp_lt_u32 vcc, 111, v0')
    a('s_mov_b64 s[44:45], vcc')
    a(f'v_mov_b32 v6, {(448+224)*8}')
    a('v_cndmask_b32 v6, v6, 0, s[44:45]')
    a('v_add_u32 v4, v4, v6')
    a('s_mul_i32 s20, s25, 1792')
    a(f's_add_u32 s20, s20, {MODP + (1344-224)*8}')
    a.label('ka_pp_g'); a.hist = []
    a('s_waitcnt vmcnt(0)')
    stamp(a)
    a(f's_mov_b32 s30, {SPIN}')
    a.label('ka_pp_l'); a.hist = []
    MA = 64
    a('s_mov_b32 s21, s20')
    for i in range(NQ):
        a(f'buffer_load_dwordx4 {v(MA+4*i,4)}, v4, s[12:15], s21 offen sc1')
        if i < NQ-1: a('s_add_u32 s21, s21, 21504')
    a('s_waitcnt vmcnt(0)')
    for i in range(2*NQ): a(f'v_xor_b32 v{MA+2*i}, s34, v{MA+2*i}')
    a(f'v_or_b32 v27, v{MA}, v{MA+2}')
    for i in range(2, 2*NQ, 2): a(f'v_or3_b32 v27, v27, v{MA+2*i}, v{MA+2*i+2}')
    a('v_cmp_ne_u32 vcc, 0, v27')
    a('s_cbranch_vccz ka_pp_go')
    a(f's_sleep {P.get("PSL", 8)}')
    a('s_sub_u32 s30, s30, 1')
    a('s_cbranch_scc0 ka_pp_l')
    a('s_endpgm')
    a.label('ka_pp_go'); a.hist = []
    stamp(a)
    for i in range(1, NQ):
        for b in (MA+1, MA+3): a(f'v_add_f32 v{b}, v{b}, v{b+4*i}')
    a(f'v_cvt_pk_bf16_f32 v14, 0, v{MA+1}')
    a(f'v_cvt_pk_bf16_f32 v15, 0, v{MA+3}')
    a('s_cmp_eq_u32 s3, 112')
    a('s_cbranch_scc0 ka_pp2')
    a('v_lshrrev_b32 v4, 1, v4')
    a(f's_mov_b32 s7, {MOD + 5*448*4}')
    a('buffer_store_dwordx2 v[14:15], v4, s[12:15], s7 offen')
    a('s_endpgm')
    a.label('ka_pp2'); a.hist = []
    a('v_cndmask_b32 v6, 1.0, 0, s[44:45]')
    a('v_add_f32 v14, v14, v6'); a('v_add_f32 v15, v15, v6')
    a('v_cvt_pk_bf16_f32 v14, v14, v15')
    a(f'ds_write_b32 v5, v14 offset:{VT}')
    a('v_bfe_u32 v6, v0, 5, 1')
    a('v_bfe_u32 v7, v0, 2, 2')
    a('v_lshl_add_u32 v7, v6, 3, v7')
    a('v_lshlrev_b32 v7, 7, v7')
    a('v_bfe_u32 v8, v0, 4, 1')
    a('v_lshl_add_u32 v7, v8, 5, v7')
    a('v_and_b32 v8, 3, v0')
    a('v_lshl_add_u32 v7, v8, 3, v7')
    a('v_lshrrev_b32 v8, 3, v0')
    a('v_lshrrev_b32 v9, 6, v0')
    a('v_xor_b32 v8, v8, v9')
    a('v_and_b32 v8, 1, v8')
    a('v_lshl_add_u32 v7, v8, 6, v7')
    a('s_lshr_b32 s21, s24, 1')
    a('s_mul_i32 s7, s21, 14336')
    a('v_add_u32 v7, s7, v7')
    a('v_bfe_u32 v8, v0, 2, 1')
    a('v_mul_u32_u24 v8, 448, v8')
    a('v_lshl_add_u32 v8, v6, 4, v8')
    a('s_mul_i32 s7, s21, 224')
    a('v_add_u32 v9, s7, v8')
    a('v_and_b32 v8, 63, v0')
    a('v_lshlrev_b32 v8, 4, v8')
    a('s_and_b32 s22, s24, 1')
    a('s_lshl_b32 s7, s26, 1'); a('s_add_u32 s22, s22, s7')
    a('s_lshl_b32 s22, s22, 1'); a('s_and_b32 s7, s3, 1'); a('s_add_u32 s22, s22, s7')
    a('s_mul_i32 s22, s22, 29696')
    a(f's_add_u32 s22, s22, {WP}')
    a('s_lshl_b32 s7, s25, 1'); a('s_add_u32 s21, s21, s7')
    a('s_lshl_b32 s23, s21, 2'); a('s_add_u32 s23, s23, s22')
    a(f's_add_u32 s23, s23, {28*1024}')
    a('s_mul_i32 s21, s21, 7168'); a('s_add_u32 s22, s22, s21')
    a('s_waitcnt lgkmcnt(0)')
    a('s_barrier')
    stamp(a)
    def ppld(i):
        a(f'ds_read_b64_tr_b16 {v(32+4*i,2)}, v7 offset:{2048*i}')
        a(f'ds_read_b64_tr_b16 {v(34+4*i,2)}, v7 offset:{2048*i+512}')
        a(f'ds_read_b128 {v(64+4*i,4)}, v9 offset:{VT+32*i}')
    for i in range(4): ppld(i)
    for i in range(7):
        a(f's_waitcnt lgkmcnt({3*min(3, 6-i)})')
        if i % 4 == 0 and i: a('s_add_u32 s22, s22, 4096')
        a(f'buffer_store_dwordx4 {v(32+4*i,4)}, v8, s[12:15], s22 offen offset:{1024*(i%4)} {WSC}')
        a(f'v_mfma_f32_32x32x16_bf16 v[96:111], {v(64+4*i,4)}, {v(32+4*i,4)}, {"0" if i == 0 else "v[96:111]"}')
        if i + 4 < 7: ppld(i + 4)
    a('v_cvt_pk_bf16_f32 v10, 0, v96')
    a('v_sub_f32 v11, v96, v10')
    a('v_cvt_pk_bf16_f32 v10, v10, v11')
    a('buffer_store_dword v10, v8, s[12:15], s23 offen')
    stamp_end(a, kidx)

    a.label('ka_mod'); a.hist = []
    St.n = 1
    a(f's_cmp_ge_u32 s2, {B_MOD + 105}')
    a('s_cbranch_scc1 ka_end')
    a('s_load_dwordx4 s[8:11], s[0:1], 104')
    a('s_load_dwordx2 s[36:37], s[0:1], 96')
    a(f's_setprio {P.get("PLN", 3)}')
    a(f's_sub_u32 s3, s2, {B_MOD}')
    a('s_mul_i32 s6, s3, 49'); a('s_lshr_b32 s6, s6, 10')
    a('s_mul_i32 s7, s6, 21'); a('s_sub_u32 s7, s3, s7')
    a('v_and_b32 v1, 7, v0')
    a('v_lshrrev_b32 v2, 3, v0')
    a('s_mul_i32 s16, s6, 96')
    a('v_add_u32 v2, s16, v2')
    a('v_mul_u32_u24 v3, 5376, v2')
    a('v_lshl_add_u32 v3, v1, 4, v3')
    a('s_lshl_b32 s16, s7, 7')
    a('v_add_u32 v3, s16, v3')
    a('v_lshlrev_b32 v4, 1, v2')
    a(f'v_add_u32 v5, {32*5376}, v3')
    a(f'v_add_u32 v13, {64*5376}, v3')
    a('s_waitcnt lgkmcnt(0)')
    srd(a, 40, 8, 896)
    srd(a, 12, 10, 448*5376)
    for i in range(3): a(f'buffer_load_ushort v{10+i}, v4, s[40:43], 0 offen offset:{64*i}')
    VA = (3, 5, 13)
    for i in range(3): a(f'buffer_load_dwordx4 {v(32+4*i,4)}, v{VA[i]}, s[12:15], 0 offen')
    def t2ld():
        for i in range(3): a(f'buffer_load_dwordx4 {v(44+4*i,4)}, v{VA[i]}, s[12:15], 0 offen offset:2688')
    ME = P.get('ME', 0)
    if ME: t2ld()
    a('v_lshrrev_b32 v6, 4, v0')
    a('v_lshlrev_b32 v6, 8, v6')
    a('v_lshl_add_u32 v6, v1, 5, v6')
    a('v_and_b32 v7, 63, v0')
    a('v_lshlrev_b32 v7, 2, v7')
    a('v_mov_b32 v9, 0')
    a('v_lshrrev_b32 v8, 6, v0')
    a('v_readfirstlane_b32 s20, v8')
    a('s_mul_i32 s16, s6, 21504')
    a('s_lshl_b32 s17, s7, 9')
    a('s_add_u32 s16, s16, s17')
    a(f's_add_u32 s16, s16, {MODP}')
    a('v_lshl_add_u32 v8, v7, 1, s16')
    stamp(a)
    a(f's_waitcnt vmcnt({3+3*ME})')
    for i in range(3): a(f'v_lshlrev_b32 v{10+i}, 16, v{10+i}')
    for i in range(3): a(f'v_mul_f32 v{20+i}, {fhex(-LOG2E)}, v{10+i}')
    for i in range(3): a(f'v_exp_f32 v{20+i}, v{20+i}')
    for i in range(3): a(f'v_add_f32 v{20+i}, 1.0, v{20+i}')
    for i in range(3): a(f'v_rcp_f32 v{20+i}, v{20+i}')
    for i in range(3): a(f'v_mul_f32 v{14+2*i}, v{10+i}, v{20+i}')
    for i in range(3): rb1(a, 14+2*i)
    ACC = 64
    for tk in range(2):
        LB = 32768 + 4096*tk
        for i in range(3):
            if tk == 0: a(f's_waitcnt vmcnt({2-i+3*ME})')
            if tk == 0 and i == 0: stamp(a)
            src = 32 + 12*tk + 4*i
            for j in range(4):
                a(f'v_lshlrev_b32 v{20+2*j}, 16, v{src+j}')
                a(f'v_and_b32 v{21+2*j}, 0xffff0000, v{src+j}')
            for j in range(0, 8, 2):
                if i == 0: a(f'v_pk_mul_f32 {v(ACC+j,2)}, {v(20+j,2)}, {v(14+2*i,2)} op_sel_hi:[1,0]')
                else: a(f'v_pk_fma_f32 {v(ACC+j,2)}, {v(20+j,2)}, {v(14+2*i,2)}, {v(ACC+j,2)} op_sel_hi:[1,0,1]')
        if tk == 0:
            nonce_ld(60, 9)
            if not ME: t2ld()
        for j in range(8):
            a(f'v_add_f32_dpp v{ACC+j}, v{ACC+j}, v{ACC+j} row_ror:8 row_mask:0xf bank_mask:0xf')
        a(f'ds_write_b128 v6, {v(ACC,4)} offset:{LB}')
        a(f'ds_write_b128 v6, {v(ACC+4,4)} offset:{LB+16}')
        a('s_waitcnt lgkmcnt(0)')
        a('s_barrier')
        stamp(a)
        a(f's_cmp_lg_u32 s20, {tk}')
        a(f's_cbranch_scc1 ka_mod_n{tk}')
        for i in range(16):
            a(f'ds_read_b32 v{72+i}, v7 offset:{LB+256*i}')
        if tk == 0: a(f's_waitcnt vmcnt({0 if ME else 3})')
        nonce_get(60, 9, 34, f'mod{tk}')
        a('v_mov_b32 v30, s34')
        a('s_waitcnt lgkmcnt(0)')
        for st in (8, 4, 2):
            for i in range(st):
                a(f'v_add_f32 v{72+i}, v{72+i}, v{72+st+i}')
        a('v_add_f32 v31, v72, v73')
        if tk == 1: a(f'v_add_u32 v8, {1344*8}, v8')
        a('global_store_dwordx2 v8, v[30:31], s[4:5] sc1')
        if tk == 0:
            a('s_waitcnt vmcnt(1)')
            a('s_branch ka_mod_m')
        a.label(f'ka_mod_n{tk}'); a.hist = []
        if tk == 0:
            a('s_waitcnt vmcnt(0)')
            a.label('ka_mod_m'); a.hist = []
    if P.get('x_pub'):
        n0 = St.n
        stamp_end(a, kidx)
        St.n = n0
    a(f's_setprio {P.get("PPP", 0)}')
    a('s_sub_u32 s3, s3, 48')
    a('s_cmp_ge_u32 s3, 56')
    a('s_cbranch_scc1 ka_end')
    a('v_lshrrev_b32 v1, 6, v0')
    a('v_and_b32 v2, 63, v0')
    a('v_lshlrev_b32 v3, 4, v2')
    a('s_mul_i32 s21, s20, 7168')
    a('s_mul_i32 s6, s3, 28672')
    a('s_add_u32 s6, s6, s21')
    srd(a, 12, 36, 1792*448*2)
    srd(a, 16, 4, WSZ2)
    for i in range(7):
        if i % 4 == 0:
            a(f's_add_u32 m0, s21, {i*1024}')
            a(f's_add_u32 s7, s6, {i*1024}')
        a(f'buffer_load_dwordx4 v3, s[12:15], s7 offen offset:{(i%4)*1024} lds')
    a('v_bfe_u32 v4, v0, 5, 1')
    a('v_bfe_u32 v5, v0, 2, 2')
    a('v_lshl_add_u32 v4, v4, 2, v5')
    a('v_and_b32 v5, 1, v1')
    a('v_lshl_add_u32 v4, v5, 4, v4')
    a('v_mul_u32_u24 v4, 896, v4')
    a('v_bfe_u32 v6, v0, 4, 1')
    a('v_and_b32 v7, 3, v0')
    a('v_lshl_add_u32 v4, v6, 5, v4')
    a('v_lshl_add_u32 v4, v7, 3, v4')
    a('v_lshrrev_b32 v6, 1, v1')
    a('v_mul_u32_u24 v7, 448, v6')
    a('v_add_u32 v4, v4, v7')
    a('v_mul_u32_u24 v7, 784, v6')
    a('v_add_u32 v7, v7, v5')
    a('v_lshl_add_u32 v8, v7, 10, v3')
    a('s_lshl_b32 s22, s3, 11')
    a(f's_add_u32 s22, s22, {WD}')
    a('s_waitcnt vmcnt(0)')
    a('s_barrier')
    stamp(a)
    for i in range(7):
        a(f'ds_read_b64_tr_b16 {v(32+4*i,2)}, v4 offset:{64*i}')
        a(f'ds_read_b64_tr_b16 {v(34+4*i,2)}, v4 offset:{64*i+7168}')
    for i in range(7):
        a(f's_add_u32 s7, s22, {i*112*1024}')
        a(f's_waitcnt lgkmcnt({12-2*i})')
        a(f'buffer_store_dwordx4 {v(32+4*i,4)}, v8, s[16:19], s7 offen {WSC}')
    stamp_end(a, kidx)

    a.label('ka_cv'); a.hist = []
    St.n = 1
    a('s_load_dwordx16 s[8:23], s[0:1], 8')
    a(f's_setprio {P.get("PKG", 1)}')
    a(f's_sub_u32 s3, s2, {B_CV}')
    a('s_and_b32 s33, s3, 0xffffffe0')
    a('s_and_b32 s6, s3, 7'); a('s_lshl_b32 s6, s6, 2'); a('s_or_b32 s33, s33, s6')
    a('s_bfe_u32 s6, s3, 0x20003'); a('s_or_b32 s33, s33, s6')
    a('s_lshl_b32 s3, s33, 9')
    a('v_lshl_add_u32 v1, v0, 1, s3')
    a('s_lshl_b32 s6, s33, 1')
    a('v_mov_b32 v9, s6')
    a('s_waitcnt lgkmcnt(0)')
    for i in range(6):
        a(f'global_load_ushort v{2+i}, v1, s[{8+2*i}:{9+2*i}]')
    a('global_load_ushort v8, v9, s[20:21]')
    a('global_load_ushort v112, v9, s[22:23]')
    a('v_lshlrev_b32 v24, 4, v0')
    a('v_sub_u32 v24, 4094, v24')
    a('v_cvt_f32_u32 v10, v24')
    for e in range(1, 8): a(f'v_add_f32 v{10+e}, {fhex(-2.0*e)}, v10')
    for e in range(8): rb1(a, 10+e)
    for e in range(8): a(f'v_cvt_u32_f32 v{10+e}, v{10+e}')
    a('v_lshrrev_b32 v24, 6, v0')
    a('v_mul_u32_u24 v24, 8704, v24')
    a('v_and_b32 v25, 63, v0')
    a('v_lshl_add_u32 v20, v25, 2, v24')
    a('v_and_b32 v26, 31, v0')
    a('v_bfe_u32 v27, v0, 5, 1')
    a('v_mul_u32_u24 v28, 272, v26')
    a('v_lshl_add_u32 v28, v27, 4, v28')
    a('v_add_u32 v21, v28, v24')
    a('v_mul_u32_u24 v28, 144, v26')
    a('v_lshl_add_u32 v28, v27, 4, v28')
    a('v_add_u32 v22, v28, v24')
    a('v_lshrrev_b32 v26, 3, v0')
    a('v_and_b32 v27, 7, v0')
    a('v_mul_u32_u24 v28, 144, v26')
    a('v_lshl_add_u32 v18, v27, 4, v28')
    a('v_lshlrev_b32 v28, 1, v26'); a('v_subrev_u32 v28, 8, v28')
    a('v_lshlrev_b32 v29, 2, v26'); a('v_subrev_u32 v29, 32, v29')
    a('v_lshlrev_b32 v30, 3, v26'); a('v_subrev_u32 v30, 96, v30')
    a('v_max3_i32 v28, v26, v28, v29')
    a('v_max_i32 v28, v28, v30')
    a('v_min_i32 v28, 65, v28')
    a('v_and_b32 v29, 7, v28')
    a('v_lshrrev_b32 v28, 3, v28')
    a('v_lshl_add_u32 v28, v28, 8, v29')
    a('v_lshlrev_b32 v28, 1, v28')
    a('v_lshl_add_u32 v19, v27, 6, v28')
    a('v_mov_b32 v113, 0')
    a('v_bfe_u32 v25, v0, 3, 2')
    a('v_cmp_eq_u32 vcc, 3, v25')
    a('v_addc_co_u32 v25, vcc, 0, v25, vcc')
    a('v_mul_u32_u24 v25, 3584, v25')
    a('v_and_b32 v26, 7, v0')
    a(f'v_cmp_gt_u32 s[36:37], {NQ}, v26')
    a('v_lshrrev_b32 v27, 3, v0')
    a('v_lshlrev_b32 v118, 4, v26')
    a('v_lshl_add_u32 v118, v27, 9, v118')
    a('v_mul_u32_u24 v119, 57344, v27')
    a('v_lshl_add_u32 v119, v26, 2, v119')
    a('v_mul_u32_u24 v140, 160, v27')
    a('v_lshl_add_u32 v140, v26, 2, v140')
    a(f'v_min_u32 v26, {NQ-1}, v26')
    a('v_mul_u32_u24 v26, 21504, v26')
    a('s_lshl_b32 s6, s33, 3')
    a(f's_add_u32 s6, s6, {MODP}')
    a('v_add3_u32 v115, v25, v26, s6')
    a('v_lshrrev_b32 v24, 1, v0')
    a('v_mul_u32_u24 v1, 14336, v24')
    a('v_and_b32 v24, 1, v0')
    a('v_lshl_add_u32 v1, v24, 4, v1')
    a('s_lshl_b32 s44, s33, 5')
    for q in range(1, 4): a(f's_add_u32 s{44+q}, s44, {14336*q}')
    a(f's_mov_b32 s48, {STA1}')
    srd(a, 40, 4, WSZ2)
    stamp(a)
    a('s_waitcnt vmcnt(0)')
    stamp(a)
    for i in range(7):
        a(f'v_lshlrev_b32 v{2+i}, 16, v{2+i}')
    Lf = struct.unpack('<f', struct.pack('<f', LOG2E))[0]
    Llo = LOG2E - Lf
    a(f's_mov_b32 s24, {fhex(Lf)}')
    a(f's_mov_b32 s25, {fhex(Llo)}')
    a(f's_mov_b32 s26, {fhex(math.log(2.0))}')
    a('v_mul_f32 v24, s24, v8')
    a('v_fma_f32 v25, v8, s24, -v24')
    a('v_fma_f32 v25, v8, s25, v25')
    a('v_exp_f32 v24, v24')
    a('v_mul_f32 v25, s26, v25')
    a('v_fma_f32 v8, v24, v25, v24')
    rb1(a, 8)
    a('v_mul_f32 v2, v8, v2')
    a('v_mul_f32 v3, v8, v3')
    a('v_mul_f32 v4, v8, v4')
    a('v_mul_f32 v5, v8, v5')
    a('v_mul_f32 v2, s24, v2')
    a('v_mul_f32 v3, 0.15915494309189532, v3')
    def direct(dst, mult, conj):
        if mult == 1:
            a('v_exp_f32 v24, v2'); a('v_fract_f32 v25, v3')
        else:
            a(f'v_mul_f32 v24, {fhex(float(mult))}, v2')
            a(f'v_mul_f32 v25, {fhex(float(mult))}, v3')
            a('v_exp_f32 v24, v24'); a('v_fract_f32 v25, v25')
        a('v_cos_f32 v26, v25')
        a('v_sin_f32 v27, v25')
        a(f'v_mul_f32 v{dst}, v24, v26')
        if conj: a(f'v_mul_f32 v{dst+1}, -v24, v27')
        else: a(f'v_mul_f32 v{dst+1}, v24, v27')
    direct(34, 8, False)
    E1, E256 = 58, 60
    direct(E1, 1, True)
    direct(E256, 256, True)
    a('v_mov_b32 v32, 1.0'); a('v_mov_b32 v33, 0')
    cmul(a, 36, 34, 34, 50)
    cmul(a, 38, 36, 34, 52)
    cmul(a, 48, 36, 36, 54)
    cur, nxt = 32, 40
    for blk in range(8):
        for c in range(4):
            a(f'v_cvt_pk_bf16_f32 v{28+c}, v{cur+2*c}, v{cur+2*c+1}')
        if blk < 7:
            for c in range(4):
                cmul(a, nxt+2*c, cur+2*c, 48, 50+2*c)
        for c in range(4):
            a(f'ds_write_b32 v20, v{28+c} offset:{(blk*4+c)*272}')
        cur, nxt = nxt, cur
    nonce_ld(114, 113)
    for st in range(8):
        a(f'ds_read_b128 {v(64+4*st,4)}, v21 offset:{32*st}')
    xr = {}
    pool = list(range(32, 48, 2)) + [96, 98, 100, 102, 104, 106]
    def newx(i):
        xr[i] = pool.pop(0); return xr[i]
    def freex(i): pool.append(xr.pop(i))
    def wr(i):
        t = 28 + (i & 3)
        a(f'v_cvt_pk_bf16_f32 v{t}, v{xr[i]}, v{xr[i]+1}')
        a(f'ds_write_b32 v20, v{t} offset:{i*272}')
    x0 = newx(0)
    a(f'v_mul_f32 v{x0}, v6, v4')
    a(f'v_mul_f32 v{x0+1}, -v6, v5')
    a(f'v_fma_f32 v{x0}, -v7, v5, v{x0}')
    a(f'v_fma_f32 v{x0+1}, -v7, v4, v{x0+1}')
    E2 = 62
    cmul(a, E2, E1, E1, 50)
    cmul(a, newx(1), xr[0], E1, 52)
    tt = [50, 52, 54, 56]
    k = 0
    for i in range(2, 8):
        cmul(a, newx(i), xr[i-2], E2, tt[k & 3]); k += 1
    for i in range(8): wr(i)
    for i in (1, 3, 5, 7): freex(i)
    for j, src in enumerate((0, 2, 4, 6)):
        cmul(a, newx(8+j), xr[src], E256, tt[j])
    for i in (0, 2, 4, 6): freex(i)
    cmul(a, newx(12), xr[8], E256, 50)
    cmul(a, newx(13), xr[10], E256, 52)
    for i in range(8, 12): wr(i)
    cmul(a, newx(14), xr[12], E256, 54)
    cmul(a, newx(15), xr[13], E256, 56)
    for i in range(8, 12): freex(i)
    wr(12); wr(13)
    cmul(a, newx(16), xr[14], E256, 50)
    wr(14); wr(15)
    for i in range(17, 21):
        cmul(a, newx(i), xr[i-1], E256, tt[i & 3])
        wr(i-1)
    wr(20)
    stamp(a)
    SR = 120
    def poll_ld():
        for q in range(4): a(f'buffer_load_dwordx4 {v(SR+4*q,4)}, v118, s[40:43], s48 offen offset:{128*q} sc1')
        a('global_load_dwordx2 v[116:117], v115, s[4:5] sc1')
    def poll_chk():
        for q in range(4): a(f'v_xor_b32 v{136+q}, s34, v{SR+4*q}')
        a('v_or3_b32 v136, v136, v137, v138')
        a('v_xor_b32 v137, s34, v116')
        a('v_or3_b32 v136, v136, v139, v137')
        a('v_cmp_ne_u32 vcc, 0, v136')
    npd = [0]
    def poll_done():
        npd[0] += 1; U = npd[0]
        a('s_waitcnt vmcnt(0)')
        nonce_get(114, 113, 34, f'cv{U}')
        if P.get('x_diag'):
            stamp(a)
            a(f's_mov_b32 s30, {SPIN}')
            a('v_cmp_ne_u32 s[90:91], s34, v116')
            a(f'v_cmp_ne_u32 s[92:93], s34, v{SR}')
        poll_chk()
        a(f's_cbranch_vccnz ka_rp{U}')
        a.label(f'ka_rp_ret{U}')
        if P.get('x_diag'):
            a('s_bcnt1_i32_b64 s92, s[92:93]')
            a(f's_sub_u32 s93, {SPIN}, s30')
            a('s_lshl_b32 s93, s93, 8')
            a('s_or_b32 s92, s92, s93')
            a(f's_mov_b32 s{60+2*St.n}, s90'); St.n += 1
            a(f's_mov_b32 s{60+2*St.n}, s92'); St.n += 1
        def blk():
            a.label(f'ka_rp{U}'); a.hist = []
            a(f's_mov_b32 s30, {SPIN}')
            a.label(f'ka_rp_l{U}')
            a('s_mov_b64 exec, vcc')
            if P.get('KSL', 6): a(f's_sleep {P.get("KSL", 6)}')
            poll_ld()
            a('s_sub_u32 s30, s30, 1')
            a('s_cbranch_scc1 ka_end')
            a('s_waitcnt vmcnt(0)')
            poll_chk()
            a(f's_cbranch_vccnz ka_rp_l{U}')
            a('s_mov_b64 exec, -1')
            a(f's_branch ka_rp_ret{U}')
        retry.append(blk)
        for q in range(4): a(f'buffer_load_dword v{136+q}, v119, s[40:43], s{44+q} offen sc1')
        a('buffer_load_dwordx4 v[144:147], v1, s[40:43], s44 offen sc1')
        if PK == PK2: stamp(a)
    PI, PK = P.get('PI', 3), P.get('PK', 6)
    PI2, PK2 = P.get('PI2', PI), P.get('PK2', PK)
    def at(pos):
        for (x1, x2, fn, nm_) in ((PI, PI2, poll_ld, 'i'), (PK, PK2, poll_done, 'k')):
            if x1 == pos and x2 == pos: fn()
            elif x1 == pos or x2 == pos:
                a('s_cmp_ge_u32 s2, 512')
                a(f's_cbranch_scc{1 if x1 == pos else 0} ka_sk{nm_}{pos}')
                fn()
                a.label(f'ka_sk{nm_}{pos}')
    for st in range(8):
        a(f'ds_read_b128 {v(32+4*st,4)}, v21 offset:{32*st}')
    at(2)
    ACC = 96
    for st in range(8):
        a(f's_waitcnt lgkmcnt({7-st})')
        a(f'v_mfma_f32_32x32x16_bf16 {v(ACC,16)}, {v(64+4*st,4)}, {v(32+4*st,4)}, {"0" if st == 0 else v(ACC,16)}')
    a('v_lshlrev_b32 v2, 4, v0')
    a('v_lshrrev_b32 v3, 2, v0')
    a('v_mul_u32_u24 v3, 80, v3')
    a('v_and_b32 v4, 3, v0')
    a('v_lshl_add_u32 v3, v4, 4, v3')
    a('v_lshrrev_b32 v28, 6, v0')
    a('v_and_b32 v29, 7, v0')
    a('v_bfe_u32 v30, v0, 3, 2')
    a('v_bfe_u32 v31, v0, 5, 1')
    for q in range(4):
        a(f'ds_write_b128 v22, {v(ACC+4*q,4)} offset:{32*q}')
    a('v_mul_u32_u24 v4, 4160, v29')
    a('v_sub_u32 v5, v31, v30')
    a('v_lshl_add_u32 v4, v5, 4, v4')
    a('v_lshlrev_b32 v5, 9, v28')
    a('v_sub_u32 v4, v4, v5')
    a(f'v_add_u32 v4, {4080 - 32*78}, v4')
    a('s_waitcnt lgkmcnt(0)')
    a('s_barrier')
    stamp(a)
    for w in range(4):
        a(f'ds_read_b128 {v(32+4*w,4)}, v18 offset:{8704*w}')
    at(3)
    a('s_waitcnt lgkmcnt(2)')
    for e in range(4): a(f'v_add_f32 v{32+e}, v{32+e}, v{36+e}')
    a('s_waitcnt lgkmcnt(0)')
    for e in range(4): a(f'v_add_f32 v{40+e}, v{40+e}, v{44+e}')
    for e in range(4): a(f'v_add_f32 v{32+e}, v{32+e}, v{40+e}')
    a('v_cvt_pk_bf16_f32 v36, v32, v33')
    a('v_cvt_pk_bf16_f32 v37, v34, v35')
    a(f'ds_write_b16 v19, v36 offset:{FT}')
    a(f'ds_write_b16_d16_hi v19, v36 offset:{FT+16}')
    a(f'ds_write_b16 v19, v37 offset:{FT+32}')
    a(f'ds_write_b16_d16_hi v19, v37 offset:{FT+48}')
    a('v_and_b32 v29, 31, v0')
    a('v_lshlrev_b32 v5, 3, v28')
    a('v_sub_u32 v5, v29, v5')
    a('v_add_u32 v5, 25, v5')
    a('v_mul_u32_u24 v5, 80, v5')
    a('v_lshl_add_u32 v5, v31, 4, v5')
    a('s_waitcnt lgkmcnt(0)')
    a('s_barrier')
    for e in range(8):
        a(f'ds_read_u16 v{40+e}, v{10+e} offset:{FT}')
    at(4)
    for i in range(4): a(f'v_mov_b32 v{24+i}, 0')
    a('v_and_b32 v6, 7, v0')
    a('v_mul_u32_u24 v6, 4160, v6')
    a('v_lshrrev_b32 v7, 3, v0')
    a('v_lshl_add_u32 v6, v7, 4, v6')
    a('v_cmp_gt_u32 vcc, 24, v0')
    a('s_and_saveexec_b64 s[18:19], vcc')
    a('ds_write_b128 v6, v[24:27] offset:4096')
    a('s_mov_b64 exec, s[18:19]')
    G = 16; G1 = 32; O = 40; O1 = 48
    a('s_waitcnt lgkmcnt(0)')
    for e in range(4):
        a(f'v_lshl_or_b32 v{G+e}, v{41+2*e}, 16, v{40+2*e}')
    a(f'ds_write_b128 v2, {v(G,4)} offset:{7*4160}')
    at(5)
    a('v_readfirstlane_b32 s23, v112')
    a('s_lshl_b32 s23, s23, 16')
    a('s_waitcnt lgkmcnt(0)')
    a('s_barrier')
    stamp(a)
    a(f'ds_read_b128 {v(G+4,4)}, v2 offset:{7*4160+16}')
    a('v_cmp_gt_u32 vcc, 160, v0')
    a('s_and_saveexec_b64 s[18:19], vcc')
    a(f'ds_write_b128 v2, v[24:27] offset:{UB}')
    a('s_mov_b64 exec, s[18:19]')
    a('s_waitcnt lgkmcnt(0)')
    a(f'ds_write_b128 v2, {v(G+2,4)} offset:{3*4160}')
    for k in range(6): a(f'v_mov_b32 v{G1+k}, v{G+1+k}')
    a(f'ds_write_b128 v2, {v(G1,4)} offset:{5*4160}')
    a(f'ds_write_b128 v2, {v(G1+2,4)} offset:{1*4160}')
    for k in range(6): a(f'v_alignbit_b32 v{O+k}, v{G+k+1}, v{G+k}, 16')
    a(f'ds_write_b128 v2, {v(O,4)} offset:{6*4160}')
    a(f'ds_write_b128 v2, {v(O+2,4)} offset:{2*4160}')
    for k in range(6): a(f'v_alignbit_b32 v{O1+k}, v{G+k+2}, v{G+k+1}, 16')
    a(f'ds_write_b128 v2, {v(O1,4)} offset:{4*4160}')
    a(f'ds_write_b128 v2, {v(O1+2,4)} offset:{0*4160}')
    if not P.get('x_diag'): stamp(a)
    at(6)
    a('v_cndmask_b32 v117, 0, v117, s[36:37]')
    for m in ('quad_perm:[1,0,3,2]', 'quad_perm:[2,3,0,1]', 'row_half_mirror'):
        a(f'v_add_f32_dpp v117, v117, v117 {m} row_mask:0xf bank_mask:0xf')
        q = ('quad_perm:[1,0,3,2]', 'quad_perm:[2,3,0,1]', 'row_half_mirror').index(m)
        a(f'v_lshlrev_b32 v{SR+4*q}, 16, v{SR+1+4*q}')
        a(f'v_and_b32 v{SR+1+4*q}, 0xffff0000, v{SR+1+4*q}')
    rb1(a, 117)
    a(f'v_lshlrev_b32 v{SR+12}, 16, v{SR+13}')
    a('v_add_f32 v116, 1.0, v117')
    a(f'v_and_b32 v{SR+13}, 0xffff0000, v{SR+13}')
    rb1(a, 116)
    a('v_readlane_b32 s20, v117, 0')
    a('v_readlane_b32 s22, v117, 16')
    a('v_readlane_b32 s21, v116, 8')
    a('v_readlane_b32 s24, v116, 24')
    H = 104; T = 64
    a('s_waitcnt vmcnt(1)')
    if not P.get('x_diag'): stamp(a)
    for q in range(4):
        a(f'v_lshlrev_b32 v{T+2*q}, 16, v{136+q}')
        a(f'v_and_b32 v{T+1+2*q}, 0xffff0000, v{136+q}')
    for e in range(8): a(f'v_sub_f32 v{T+e}, v{T+e}, v{SR+4*(e>>1)+(e&1)}')
    for e in range(8): rb1(a, T+e)
    for e in range(8): a(f'v_mul_f32 v{T+e}, v{T+e}, v{SR+4*(e>>1)+2+(e&1)}')
    for e in range(8): rb1(a, T+e)
    for e in range(8): a(f'v_mul_f32 v{T+e}, s21, v{T+e}')
    for e in range(8): rb1(a, T+e)
    for e in range(8): a(f'v_add_f32 v{T+e}, s20, v{T+e}')
    for q in range(4):
        a(f'v_cvt_pk_bf16_f32 v{H+q}, v{T+2*q}, v{T+1+2*q}')
        a(f'ds_write_b32 v140, v{H+q} offset:{UB+2560+(q>>1)*80+(q&1)*32}')
    a(f's_setprio {P.get("PCV", 2)}')
    a('s_waitcnt lgkmcnt(0)')
    a('s_barrier')
    stamp(a)
    a(f'ds_read_b128 {v(H,4)}, v3 offset:{UB+2560}')
    PW = 96
    fill = []
    class FA:
        def __call__(self, x): fill.append(x)
    f = FA()
    f('v_bfe_u32 v120, v0, 1, 2')
    f('v_and_b32 v6, 1, v0')
    f('v_lshl_or_b32 v120, v6, 2, v120')
    f('v_bfe_u32 v7, v0, 5, 1')
    f('v_xor_b32 v120, v120, v7')
    f('v_lshrrev_b32 v6, 6, v0')
    f('v_lshlrev_b32 v6, 13, v6')
    f('v_and_b32 v7, 31, v0')
    f('v_lshl_add_u32 v6, v7, 7, v6')
    for q in range(4):
        f(f'v_xor_b32 v7, {2*q}, v120')
        f(f'v_lshl_add_u32 v{PW+q}, v7, 4, v6')
    f('v_bfe_u32 v120, v0, 3, 2')
    f('v_bfe_u32 v6, v0, 2, 1')
    f('v_lshl_or_b32 v120, v6, 2, v120')
    f('v_and_b32 v6, 3, v0')
    f('v_lshlrev_b32 v6, 1, v6')
    f('v_xor_b32 v120, v120, v6')
    f('v_lshrrev_b32 v6, 2, v0')
    f('v_lshlrev_b32 v6, 7, v6')
    f('v_lshl_add_u32 v100, v120, 4, v6')
    f('v_xor_b32 v120, 1, v120')
    f('v_lshl_add_u32 v101, v120, 4, v6')
    f('s_lshl_b32 s6, s33, 7')
    f(f's_add_u32 s6, s6, {X1U}')
    f('s_lshl_b32 s10, s33, 5')
    f('s_and_b32 s10, s10, 64')
    f('v_and_b32 v102, 0x70, v2')
    f('v_xor_b32 v102, s10, v102')
    f('v_lshrrev_b32 v6, 3, v0')
    f('v_mul_u32_u24 v6, 57344, v6')
    f('v_add3_u32 v102, v102, v6, s6')
    f(f'v_add_u32 v103, {X1T - X1U}, v102')
    E = 124
    for e in range(4):
        f(f'v_lshlrev_b32 v{E+2*e}, 16, v{H+e}')
        f(f'v_and_b32 v{E+1+2*e}, 0xffff0000, v{H+e}')
    for e in range(8): f(f'v_mul_f32 v{E+e}, s23, v{E+e}')
    for e in range(8): rb1(f, E+e)
    f('s_waitcnt vmcnt(0)')
    for q in range(4):
        f(f'v_lshlrev_b32 v{8+2*q}, 16, v{144+q}')
        f(f'v_and_b32 v{9+2*q}, 0xffff0000, v{144+q}')
    A0, A1 = 64, 80
    FB = 16
    trip = [(dl, kk) for dl in range(8) for kk in range(2)]
    def loads(n):
        dl, kk = trip[n]
        qp = 2*dl - kk
        b = FB + (n % 3)*16
        oa = 32*(14 - qp)
        ob = UB + (7 - dl)*80 + 32*kk
        a(f'ds_read_b128 {v(b,4)}, v4 offset:{oa+2048}')
        a(f'ds_read_b128 {v(b+4,4)}, v5 offset:{ob}')
        a(f'ds_read_b128 {v(b+8,4)}, v5 offset:{ob+2560}')
        a(f'ds_read_b128 {v(b+12,4)}, v4 offset:{oa}')
    loads(0); loads(1)
    def fl(k):
        for _ in range(k):
            if fill: a(fill.pop(0))
    for n in range(16):
        if n + 2 < 16: loads(n + 2)
        rem = min(2, 15 - n) * 4
        b = FB + (n % 3)*16
        a(f's_waitcnt lgkmcnt({rem+2})')
        a(f'v_mfma_f32_32x32x16_bf16 {v(A0,16)}, {v(b,4)}, {v(b+4,4)}, {"0" if n == 0 else v(A0,16)}')
        fl(3)
        a(f's_waitcnt lgkmcnt({rem+1})')
        a(f'v_mfma_f32_32x32x16_bf16 {v(A1,16)}, {v(b,4)}, {v(b+8,4)}, {"0" if n == 0 else v(A1,16)}')
        fl(3)
        a(f's_waitcnt lgkmcnt({rem})')
        a(f'v_mfma_f32_32x32x16_bf16 {v(A1,16)}, {v(b+12,4)}, {v(b+4,4)}, {v(A1,16)}')
    assert not fill
    a('s_barrier')
    stamp(a)
    if 'PEP' in P: a(f's_setprio {P["PEP"]}')
    for c, A in enumerate((A0, A1)):
        for q in range(4):
            a(f'ds_write_b128 v{PW+q}, {v(A+4*q,4)} offset:{4096*c}')
    a('s_waitcnt lgkmcnt(0)')
    a('s_barrier')
    for w in range(4):
        a(f'ds_read_b128 {v(16+8*w,4)}, v100 offset:{8192*w}')
        a(f'ds_read_b128 {v(20+8*w,4)}, v101 offset:{8192*w}')
    a('s_waitcnt lgkmcnt(4)')
    for e in range(8): a(f'v_add_f32 v{16+e}, v{16+e}, v{24+e}')
    a('s_waitcnt lgkmcnt(0)')
    for e in range(8): a(f'v_add_f32 v{32+e}, v{32+e}, v{40+e}')
    for e in range(8): a(f'v_add_f32 v{16+e}, v{16+e}, v{32+e}')
    for e in range(8): rb1(a, 16+e)
    for e in range(8): a(f'v_add_f32 v{16+e}, v{16+e}, v{E+e}')
    for e in range(8): rb1(a, 16+e)
    for e in range(8): a(f'v_mul_f32 v{16+e}, s22, v{16+e}')
    for e in range(8): rb1(a, 16+e)
    for e in range(8): a(f'v_add_f32 v{16+e}, v{16+e}, v{8+e}')
    for e in range(4): a(f'v_cvt_pk_bf16_f32 v{24+e}, v{16+2*e}, v{17+2*e}')
    a(f'global_store_dwordx4 v102, v[24:27], s[4:5] {XSC}')
    for e in range(8): rb1(a, 16+e)
    for e in range(8): a(f'v_mul_f32 v{16+e}, s24, v{16+e}')
    for e in range(4): a(f'v_cvt_pk_bf16_f32 v{28+e}, v{16+2*e}, v{17+2*e}')
    a(f'global_store_dwordx4 v103, v[28:31], s[4:5] {XSC}')
    stamp_end(a, kidx)

    for blk in retry: blk()
    a.label('ka_end')
    a('s_endpgm')
    a.end_kernel(nm, denorm=False)
    a.launch(nm, TOT, 256, KA_LDS)
```

```python
from gen import *
import gen
ZR = 0x1310000
STA = ZR
FLG = ZR + 0x8000
WSZ2 = 0x1380000
XL = 57344
RED = 114688
XRL = RED + 32768
KB_LDS = XRL + 8192
X1U = 0x380000
NH = 32
SPIN = 100000

class Q:
    def __init__(self, a, name, mx):
        self.a = a; self.name = name; self.mx = mx; self.order = []; self.done = -1
    def add(self, tag): self.order.append(tag)
    def cnt(self, tag):
        idx = max(self.order.index(t) for t in tag) if isinstance(tag, list) else self.order.index(tag)
        if idx <= self.done: return None
        self.done = idx
        n = len(self.order) - 1 - idx
        assert n <= self.mx, (self.name, tag, n)
        return n
    def all_done(self): self.done = len(self.order) - 1

def kb(a, kidx=2):
    SPN = str(P.get('sp', 'pro,sync0,s14,s28,s42,T0,epiB,g2e,redE,pollL,g2l')).split(',')
    def nstamp(n):
        if n in SPN: stamp(a)
    nm = 'kb_kernel'
    FSH = P.get('FSH', 7)
    assert 0x8000 + (16*128 << FSH) <= P['zero']*0x10000
    NF = P.get('NF', 15); SA = P.get('SA', 0); SL = P.get('SL', -6); PE = P.get('PE', 19); FE = P.get('FE', 13)
    FS = P.get('FS', 6); PL = P.get('PL', 22); HPRE = P.get('HPRE', 0)
    a.begin_kernel(nm)
    stamp_begin(a)
    a(f's_cmp_ge_u32 s2, {224 + NH}')
    a('s_cbranch_scc1 kb_end')
    a('s_load_dwordx2 s[4:5], s[0:1], 136')
    a('s_load_dwordx2 s[36:37], s[0:1], 120')
    a('v_lshrrev_b32 v1, 6, v0')
    a('v_and_b32 v2, 63, v0')
    a(f's_cmp_lt_u32 s2, {NH}')
    a('s_cbranch_scc1 kb_help')
    a(f's_sub_u32 s3, s2, {NH}')
    a('s_and_b32 s6, s3, 7')
    a('s_lshr_b32 s7, s3, 3')
    divmod7(a, 7, 8, 9)
    if P['g1map'] == '2x14':
        a('s_lshr_b32 s12, s8, 1'); a('s_lshl_b32 s10, s6, 1'); a('s_add_u32 s10, s10, s12')
        a('s_and_b32 s12, s8, 1')
    else:
        a('s_lshr_b32 s10, s6, 1'); a('s_lshl_b32 s10, s10, 2'); a('s_add_u32 s10, s10, s8')
        a('s_and_b32 s12, s6, 1')
    a('s_mul_i32 s11, s12, 7'); a('s_add_u32 s11, s11, s9')
    a('v_readfirstlane_b32 s20, v1')
    a('v_lshlrev_b32 v3, 4, v2')
    a('v_lshlrev_b32 v4, 4, v0')
    a(f's_mul_i32 s21, s10, {2*XL}')
    a(f's_add_u32 s21, s21, {X1T}')
    a('s_lshl_b32 s22, s11, 2')
    a('s_add_u32 s22, s22, s20')
    a(f's_mul_i32 s23, s22, {2*29*1024}')
    a(f's_add_u32 s23, s23, {WP}')
    a(f's_add_u32 s24, s23, {29*1024}')
    a('s_lshl_b32 s25, s20, 10')
    a('s_waitcnt lgkmcnt(0)')
    srd(a, 16, 4, WSZ2)
    vm = Q(a, 'vm', 63); lg = Q(a, 'lg', 15)
    def wait(vt=None, lt=None):
        nv = vm.cnt(vt) if vt is not None else None
        nl = lg.cnt(lt) if lt is not None else None
        s_ = ''
        if nv is not None: s_ += f' vmcnt({nv})'
        if nl is not None: s_ += f' lgkmcnt({nl})'
        if s_: a('s_waitcnt' + s_)
    GB = 56
    def issue(t):
        k = t[0]
        if k == 'D':
            half, kp = t[1], t[2]
            a(f's_add_u32 m0, s25, {kp*4096 + half*XL}')
            a(f's_add_u32 s26, s21, {kp*4096 + half*XL}')
            a('buffer_load_dwordx4 v4, s[16:19], s26 offen lds')
        elif k == 'G':
            ks = t[1]
            if ks % 4 == 0 and ks: a('s_add_u32 s23, s23, 4096')
            a(f'buffer_load_dwordx4 {a_(8*ks,4)}, v3, s[16:19], s23 offen offset:{(ks%4)*1024}')
        elif k == 'U':
            ks = t[1]
            if ks % 4 == 0 and ks: a('s_add_u32 s24, s24, 4096')
            a(f'buffer_load_dwordx4 {a_(8*ks+4,4)}, v3, s[16:19], s24 offen offset:{(ks%4)*1024}')
        elif k == 'W':
            i, b = t[1], t[2]
            if i % 4 == 0 and i: a(f's_add_u32 s{27+b}, s{27+b}, 4096')
            a(f'buffer_load_dwordx4 {a_(8*i+4*b,4)}, v3, s[16:19], s{27+b} offen offset:{(i%4)*1024}')
        elif k == 'H':
            ph, i = t[1], t[2]
            if i % 4 == 0 and i: a(f's_add_u32 s{29+ph}, s{29+ph}, 4096')
            a(f'buffer_load_dwordx4 {v(hreg(ph,i),4)}, v3, s[16:19], s{29+ph} offen offset:{(i%4)*1024} sc1')
        elif k == 'S':
            a(f'buffer_load_dwordx2 {v(ST+2*t[1],2)}, v9, s[16:19], s31 offen offset:{512*t[1]} sc1')
        elif k == 'R':
            a(f's_add_u32 m0, s43, {1024*t[1]}')
            a(f's_add_u32 s26, s39, {XL*t[1]}')
            a('buffer_load_dwordx4 v104, s[16:19], s26 offen lds')
        elif k == 'gb':
            a(f'buffer_load_dwordx4 {v(GB+4*t[1],4)}, v15, s[16:19], s32 offen offset:{32*t[1]}')
        elif k == 'P':
            if P.get('x_nopoll') and t[1] == 0: a('buffer_load_dword v88, v3, s[16:19], s27 offen')
            else: a(f'buffer_load_dword v{88+t[1]}, v10, s[16:19], s{33+8*t[1]} offen sc1')
        else: raise ValueError(t)
        vm.add(t)
    EF = 40; ST = 96
    def hreg(ph, i):
        if ph == 0: return 128 + 4*(i % 16)
        return 192 + 4*i if i < 16 else 128 + 4*(i - 16)
    LQ = [('D', 0, 0), ('G', 0), ('U', 0), ('D', 0, 1)]
    for ks in range(1, 28):
        LQ += [('G', ks), ('U', ks)]
        if ks % 2 == 1 and (ks + 3)//2 < 14: LQ.append(('D', 0, (ks + 3)//2))
        if ks in (24, 25): LQ.append(('D', 1, ks - 24))
    LQ += [('G', 28), ('U', 28)] + [('D', 1, kp) for kp in range(2, 14)] + [('gb', 0), ('gb', 1), ('R', 0), ('R', 1)]
    for _ in range(6): issue(LQ.pop(0))
    a('v_bfe_u32 v88, v0, 5, 1')
    a('v_bfe_u32 v89, v0, 2, 2')
    a('v_bfe_u32 v90, v0, 3, 1')
    a('v_bfe_u32 v91, v0, 4, 1')
    a('v_and_b32 v92, 3, v0')
    a('v_lshlrev_b32 v92, 3, v92')
    a('v_lshl_add_u32 v92, v91, 5, v92')
    a('v_lshl_add_u32 v92, v89, 7, v92')
    a('v_lshl_add_u32 v5, v88, 10, v92')
    a('v_lshl_add_u32 v5, v90, 6, v5')
    a('v_xor_b32 v6, 64, v5')
    for _ in range(NF - 6): issue(LQ.pop(0))
    a(f'v_add_u32 v7, {XL}, v5')
    a(f'v_add_u32 v8, {XL}, v6')
    a('v_and_b32 v93, 31, v0')
    a('v_lshlrev_b32 v9, 4, v93')
    a('v_lshl_add_u32 v9, v88, 3, v9')
    a('v_min_u32 v10, 13, v2')
    a('v_mul_u32_u24 v94, 14, v1')
    a(f'v_add_lshl_u32 v10, v10, v94, {FSH}')
    a('v_and_b32 v11, 0x3f, v92')
    a('v_lshl_add_u32 v11, v89, 6, v11')
    a('v_lshl_add_u32 v11, v88, 8, v11')
    a('v_lshl_add_u32 v11, v1, 11, v11')
    a(f'v_add_u32 v11, {XRL}, v11')
    a('v_lshrrev_b32 v104, 2, v2')
    a('v_lshlrev_b32 v104, 7, v104')
    a('v_and_b32 v94, 3, v0')
    a('v_lshl_add_u32 v104, v94, 4, v104')
    a('v_xor_b32 v94, s12, v90')
    a('v_lshl_add_u32 v104, v94, 6, v104')
    a('s_lshl_b32 s13, s9, 13')
    a('s_lshl_b32 s43, s20, 11')
    a('s_add_u32 s39, s13, s43')
    a('s_add_u32 s39, s39, s21')
    a(f's_sub_u32 s39, s39, {X1T - X1U}')
    a(f's_add_u32 s43, s43, {XRL}')
    a('s_lshl_b32 s13, s10, 7'); a('s_lshl_b32 s14, s12, 5'); a('s_add_u32 s13, s13, s14')
    a('v_add_u32 v12, s13, v93')
    a('v_mul_u32_u24 v12, 896, v12')
    a('v_lshl_add_u32 v12, v88, 4, v12')
    a('v_lshl_add_u32 v12, v1, 5, v12')
    a('s_lshl_b32 s13, s9, 7')
    a('v_add_u32 v12, s13, v12')
    a('v_lshl_add_u32 v13, v1, 11, v3')
    a('v_lshl_add_u32 v14, v1, 13, v3')
    a('v_lshlrev_b32 v15, 4, v88')
    a('v_lshl_add_u32 v15, v1, 6, v15')
    a('v_mov_b32 v95, 1')
    a('s_mul_i32 s13, s20, 28672')
    a(f's_mul_i32 s27, s9, {2*112*1024}')
    a('s_add_u32 s27, s27, s13')
    a(f's_add_u32 s27, s27, {WD}')
    a(f's_add_u32 s28, s27, {112*1024}')
    a('s_lshl_b32 s14, s10, 2')
    a('s_add_u32 s29, s14, s12')
    a(f's_mul_i32 s29, s29, {112*1024}')
    a('s_add_u32 s29, s29, s13')
    a(f's_add_u32 s29, s29, {HID}')
    a(f's_add_u32 s30, s29, {2*112*1024}')
    a('s_lshl_b32 s31, s10, 11'); a(f's_add_u32 s31, s31, {STA}')
    a('s_lshl_b32 s32, s9, 8'); a(f's_add_u32 s32, s32, {MOD + 5*448*4}')
    a(f's_lshl_b32 s33, s10, {7+FSH}'); a(f's_add_u32 s33, s33, {FLG}')
    a(f's_lshl_b32 s34, s22, {FSH}'); a('s_add_u32 s34, s34, s33')
    a(f's_add_u32 s41, s33, {64 << FSH}')
    a(f's_add_u32 s42, s34, {64 << FSH}')
    a(f's_mul_i32 s35, s14, {112*1024}')
    a('s_lshl_b32 s13, s22, 11')
    a('s_add_u32 s35, s35, s13')
    a(f's_add_u32 s35, s35, {HID}')
    srd(a, 44, 36, 2048*448*2)
    a(f's_mov_b32 s40, {SPIN}')
    XB = 16
    def trread(s, n):
        half, ks = divmod(s, 28)
        jj, second = n >> 1, n & 1
        b = XB + (s % 3)*8 + 4*jj + 2*second
        a(f'ds_read_b64_tr_b16 {v(b,2)}, v{5+2*half+jj} offset:{ks*2048 + 512*second}')
        lg.add(('x', s, n))
    def sync_for(s):
        half, ks = divmod(s, 28)
        if half == 0:
            if ks % 2 == 0: return ('D', 0, ks//2)
        else:
            if ks == 0: return [('D', 1, k) for k in range(2)]
            if ks == 4: return [('D', 1, k) for k in range(5)]
            if ks == 10: return [('D', 1, k) for k in range(14)]
        return None
    retry = []
    def epi_items(half):
        items = []
        for jj in range(2):
            g = 128 + 64*half + 32*jj; u = g + 16
            r2 = ST + 2*(2*half + jj) + 1
            ob = 72 + 8*jj
            for i0 in range(0, 16, 4):
                for i in range(i0, i0+4): items.append(f'v_max_f32 v{g+i}, 0, v{g+i}')
                for i in range(i0, i0+4): items.append(f'v_mul_f32 v{u+i}, v{u+i}, v{r2}')
                for i in range(i0, i0+4): items.append(f'v_mul_f32 v{g+i}, v{g+i}, v{u+i}')
                for i in range(i0, i0+4, 2): items.append(f'v_cvt_pk_bf16_f32 v{ob+i//2}, v{g+i}, v{g+i+1}')
                if i0 % 8 == 4:
                    items.append(('st', half, jj, i0 // 8))
        return items
    def epi_pk(half):
        for jj in range(2):
            g = 128 + 64*half + 32*jj; u = g + 16
            r2 = ST + 2*(2*half + jj)
            ob = 72 + 8*jj
            for i0 in range(0, 16, 8):
                for i in range(i0, i0+8): a(f'v_max_f32 v{g+i}, 0, v{g+i}')
                for i in range(i0, i0+8, 2): a(f'v_pk_mul_f32 {v(u+i,2)}, {v(u+i,2)}, {v(r2,2)} op_sel:[0,1] op_sel_hi:[1,1]')
                for i in range(i0, i0+8, 2): a(f'v_pk_mul_f32 {v(g+i,2)}, {v(g+i,2)}, {v(u+i,2)}')
                for i in range(i0, i0+8, 2): a(f'v_cvt_pk_bf16_f32 v{ob+i//2}, v{g+i}, v{g+i+1}')
                do_item(('st', half, jj, i0 // 8))
    def do_item(it):
        if isinstance(it, str): a(it); return
        if it[0] == 'st':
            _, half, jj, c = it
            if c == 0: a(f's_add_u32 s38, s35, {(2*half+jj)*112*1024}')
            if P.get('x_nost') and half == 0: a('buffer_load_dword v91, v3, s[16:19], s27 offen')
            else: a(f'buffer_store_dwordx4 {v(72+8*jj+4*c,4)}, v3, s[16:19], s38 offen offset:{1024*c} {"" if P.get("x_plain") else "sc1"}')
            vm.add(it)
        else: raise ValueError(it)
    def extra_mfma(half):
        for jj in range(2):
            g = 128 + 64*half + 32*jj
            e = v(EF + 4*(2*half+jj), 4)
            a(f'v_mfma_f32_32x32x16_bf16 {v(g,16)}, {a_(8*28,4)}, {e}, {v(g,16)}')
            a(f'v_mfma_f32_32x32x16_bf16 {v(g+16,16)}, {a_(8*28+4,4)}, {e}, {v(g+16,16)}')
    def set_flag(ph):
        wait(vt=[('st', ph, jj, c) for jj in range(2) for c in range(2)])
        a('s_mov_b64 exec, 1')
        a(f'buffer_store_dword v95, off, s[16:19], s{34+8*ph} sc1')
        a('s_mov_b64 exec, -1')
        vm.add(('F', ph))
    def check_stats():
        wait(vt=[('S', j) for j in range(4)])
        a(f'v_min3_u32 v90, v{ST+1}, v{ST+3}, v{ST+5}')
        a(f'v_min_u32 v90, v90, v{ST+7}')
        a('v_cmp_eq_u32 vcc, 0, v90')
        a('s_cbranch_vccnz kb_rs')
        a.label('kb_rs_ret')
        def blk():
            a.label('kb_rs'); a.hist = []
            a('s_sleep 2')
            for j in range(4):
                a(f'buffer_load_dwordx2 {v(ST+2*j,2)}, v9, s[16:19], s31 offen offset:{512*j} sc1')
            a('s_sub_u32 s40, s40, 1')
            a('s_cbranch_scc1 kb_end')
            a('s_waitcnt vmcnt(0)')
            a(f'v_min3_u32 v90, v{ST+1}, v{ST+3}, v{ST+5}')
            a(f'v_min_u32 v90, v90, v{ST+7}')
            a('v_cmp_eq_u32 vcc, 0, v90')
            a('s_cbranch_vccnz kb_rs')
            a('s_branch kb_rs_ret')
        retry.append(blk)
    def check_poll(ph):
        wait(vt=('P', ph))
        a(f'v_cmp_eq_u32 vcc, 0, v{88+ph}')
        a(f's_cbranch_vccnz kb_rp{ph}')
        a.label(f'kb_rp{ph}_ret')
        def blk():
            a.label(f'kb_rp{ph}'); a.hist = []
            if P.get('SLP', 4): a(f's_sleep {P.get("SLP", 4)}')
            a(f'buffer_load_dword v{88+ph}, v10, s[16:19], s{33+8*ph} offen sc1')
            a('s_sub_u32 s40, s40, 1')
            a('s_cbranch_scc1 kb_end')
            a('s_waitcnt vmcnt(0)')
            a(f'v_cmp_eq_u32 vcc, 0, v{88+ph}')
            a(f's_cbranch_vccnz kb_rp{ph}')
            a(f's_branch kb_rp{ph}_ret')
        retry.append(blk)
    nstamp('pro')
    wait(vt=('D', 0, 0)); a('s_barrier')
    for s in range(2):
        for n in range(4): trread(s, n)
    nstamp('sync0')
    fill = []
    nH = [0]
    PC = P.get('PC', PE + 4)
    for s in range(56):
        half, ks = divmod(s, 28)
        nstamp(f's{s}')
        gaps = [[], [], [], []]
        if s + 2 < 56:
            sy = sync_for(s + 2)
            if sy: gaps[0].append(('sync', sy))
            gaps[0] += [('tr', s+2, 0), ('tr', s+2, 1)]
            gaps[1] += [('tr', s+2, 2), ('tr', s+2, 3)]
        nl = 2 + (s & 1) + (1 if s < P.get('RAMP', 0) else 0)
        lds_ = [LQ.pop(0) for _ in range(min(nl, len(LQ)))]
        if half == 1 and ks >= 1: lds_ += [('W', ks-1, 0), ('W', ks-1, 1)]
        if s == 28 + SL: lds_ += [('S', j) for j in range(4)]
        if s == 28 + PE: lds_.append(('P', 0))
        if s == 28 + PC: check_poll(0); nstamp('pollE')
        if s >= 28 + PC:
            for _ in range(P.get('HR', 1)):
                if nH[0] < 16: lds_.append(('H', 0, nH[0])); nH[0] += 1
        ng = 2 if len(lds_) <= 4 else 3
        for n, t in enumerate(lds_): gaps[4 - ng + n*ng//len(lds_)].append(('ld', t))
        if s == 28 + SA:
            check_stats(); nstamp('stat')
            for j in range(8): a(f'v_mov_b32 v{EF+j}, v{ST+2*(j>>2)}')
            wait(vt=[('G', 28), ('U', 28)]); extra_mfma(0)
            fill = [f'v_mov_b32 v{EF+j}, v{ST+2*(j>>2)}' for j in range(8, 16)] + epi_items(0)
        if s == 28 + FE:
            assert not fill, len(fill)
            gaps[3].append(('flag', 0))
        wait(vt=[('G', ks), ('U', ks)] if half == 0 else None, lt=('x', s, 3))
        b = XB + (s % 3)*8
        for n in range(4):
            jj, mat = n >> 1, n & 1
            acc = 128 + 64*half + 32*jj + 16*mat
            a(f'v_mfma_f32_32x32x16_bf16 {v(acc,16)}, {a_(8*ks+4*mat,4)}, {v(b+4*jj,4)}, {"0" if ks == 0 else v(acc,16)}')
            used = 0
            for it in gaps[n]:
                if it[0] == 'sync': wait(vt=it[1]); a('s_barrier'); used += 2
                elif it[0] == 'tr': trread(it[1], it[2]); used += 1
                elif it[0] == 'ld': issue(it[1]); used += 2
                elif it[0] == 'flag': set_flag(it[1]); used += 4
            while fill and used < P.get('FILL', 5):
                it = fill.pop(0)
                if it is not None and not (P.get('x_nofill') and isinstance(it, str)): do_item(it)
                used += 1
    assert not LQ
    nstamp('T0')
    extra_mfma(1)
    issue(('W', 27, 0)); issue(('W', 27, 1))
    wait(vt=[('R', 0), ('R', 1)])
    for ph in range(2):
        for q in range(2):
            a(f'ds_read_b64_tr_b16 {v(64+4*ph+2*q,2)}, v11 offset:{512*q + 1024*ph}'); lg.add(('x1', ph, q))
    if PC >= 28: check_poll(0); nstamp('pollE')
    while nH[0] < HPRE: issue(('H', 0, nH[0])); nH[0] += 1
    epi_pk(1)
    nstamp('epiB')
    ACC2 = 96
    def reduce_out(ph):
        wait(vt=[('gb', 0), ('gb', 1)])
        for qd in range(4):
            for c in range(2):
                a(f'ds_write_b128 v13, {v(ACC2+8*qd+4*c,4)} offset:{qd*8192 + c*1024}')
        a('s_waitcnt lgkmcnt(0)')
        a('s_barrier')
        for sw in range(4):
            for c in range(2):
                a(f'ds_read_b128 {v(16+8*sw+4*c,4)}, v14 offset:{sw*2048 + c*1024}')
        X = 72
        for e in range(4):
            a(f'v_lshlrev_b32 v{X+2*e}, 16, v{64+4*ph+e}')
            a(f'v_and_b32 v{X+2*e+1}, 0xffff0000, v{64+4*ph+e}')
        a('s_waitcnt lgkmcnt(4)')
        for e in range(8): a(f'v_add_f32 v{16+e}, v{16+e}, v{24+e}')
        a('s_waitcnt lgkmcnt(0)')
        for e in range(8): a(f'v_add_f32 v{32+e}, v{32+e}, v{40+e}')
        for e in range(8): a(f'v_add_f32 v{16+e}, v{16+e}, v{32+e}')
        for e in range(0, 8, 2): rb2(a, 16+e, 17+e, 24 + (e >> 1))
        for e in range(8): a(f'v_mul_f32 v{16+e}, v{16+e}, v{GB+e}')
        for e in range(0, 8, 2): rb2(a, 16+e, 17+e, 24 + (e >> 1))
        for e in range(8): a(f'v_add_f32 v{16+e}, v{16+e}, v{X+e}')
        for e in range(4): a(f'v_cvt_pk_bf16_f32 v{80+e}, v{16+2*e}, v{17+2*e}')
        a('v_permlane32_swap_b32 v80, v82')
        a('v_permlane32_swap_b32 v81, v83')
        a(f's_mov_b32 s38, {ph*64*896}')
        a('buffer_store_dwordx4 v[80:83], v12, s[44:47], s38 offen')
        vm.add(('o', ph))
        lg.all_done()
    a(f'v_add_u32 v13, {RED}, v13')
    a(f'v_add_u32 v14, {RED}, v14')
    for i in range(28):
        k = 0
        while nH[0] < 28 and nH[0] < i + 16 and nH[0] < i + P.get('HLA', 14) and k < P.get('HB', 2): issue(('H', 0, nH[0])); nH[0] += 1; k += 1
        nstamp(f'e{i}')
        if i == FS: set_flag(1); nstamp('flagL')
        if i == PL: issue(('P', 1))
        wait(vt=[('H', 0, i), ('W', i, 0), ('W', i, 1)])
        for b in range(2):
            a(f'v_mfma_f32_32x32x16_bf16 {v(ACC2+16*b,16)}, {a_(8*i+4*b,4)}, {v(hreg(0,i),4)}, {"0" if i == 0 else v(ACC2+16*b,16)}')
    nstamp('g2e')
    LPRE = P.get('LPRE', 16)
    if P.get('TWO', 1):
        wait(vt=('P', 1))
        a('v_cmp_eq_u32 vcc, 0, v89')
        a('s_cbranch_vccnz kb_p2')
        so, sd, sh = list(vm.order), vm.done, list(a.hist)
        for i in range(LPRE): issue(('H', 1, i))
        reduce_out(0)
        a('s_branch kb_pm')
        a.label('kb_p2'); a.hist = sh
        vm.order, vm.done = so, sd
        issue(('P', 1, 'b'))
        reduce_out(0)
        wait(vt=('P', 1, 'b'))
        check_poll(1)
        for i in range(LPRE): issue(('H', 1, i))
        a.label('kb_pm'); a.hist = []
        nstamp('redE')
    else:
        reduce_out(0)
        nstamp('redE')
        check_poll(1)
        nstamp('pollL')
        for i in range(LPRE): issue(('H', 1, i))
    nstamp('Hl')
    a(f'v_subrev_u32 v13, {RED}, v13')
    a(f'v_subrev_u32 v14, {RED}, v14')
    for i in range(28):
        nstamp(f'l{i}')
        if i + LPRE < 28: issue(('H', 1, i + LPRE))
        wait(vt=('H', 1, i))
        for b in range(2):
            a(f'v_mfma_f32_32x32x16_bf16 {v(ACC2+16*b,16)}, {a_(8*i+4*b,4)}, {v(hreg(1,i),4)}, {"0" if i == 0 else v(ACC2+16*b,16)}')
    nstamp('g2l')
    reduce_out(1)
    stamp_end(a, kidx)
    for blk in retry: blk()

    a.label('kb_help'); a.hist = []
    St.n = 1
    a('v_lshlrev_b32 v4, 4, v0')
    a('v_and_b32 v5, 7, v0')
    a('v_and_b32 v6, 16, v0')
    a('v_lshlrev_b32 v6, 2, v6')
    a('v_xor_b32 v4, v4, v6')
    a('s_and_b32 s6, s2, 6'); a('s_lshl_b32 s6, s6, 2')
    a('s_lshr_b32 s7, s2, 3'); a('s_lshl_b32 s7, s7, 1')
    a('s_add_u32 s6, s6, s7')
    a('s_and_b32 s7, s2, 1')
    a('s_add_u32 s3, s6, s7')
    a('s_xor_b32 s8, s3, 1')
    a(f's_mul_i32 s21, s3, {XL}')
    a(f's_add_u32 s21, s21, {X1U}')
    a(f's_mul_i32 s23, s8, {XL}')
    a(f's_add_u32 s23, s23, {X1T}')
    a('s_waitcnt lgkmcnt(0)')
    srd(a, 16, 4, WSZ2)
    for i in range(14):
        a(f'buffer_load_dwordx4 {v(64+4*i,4)}, v4, s[16:19], s21 offen')
        if i < 13: a('s_add_u32 s21, s21, 4096')
        if P.get('TOUCH', 1):
            a(f'buffer_load_dwordx4 {v(128+4*i,4)}, v4, s[16:19], s23 offen')
            if i < 13: a('s_add_u32 s23, s23, 4096')
    a('v_bfe_u32 v6, v0, 4, 1')
    a('v_lshlrev_b32 v6, 4, v6')
    a('v_lshl_add_u32 v6, v5, 5, v6')
    a('v_lshrrev_b32 v7, 5, v0')
    a('v_lshl_add_u32 v6, v7, 8, v6')
    a('v_lshlrev_b32 v7, 2, v2')
    a('v_lshlrev_b32 v8, 4, v2')
    a('s_lshl_b32 s22, s3, 10')
    a(f's_add_u32 s22, s22, {STA}')
    S1, S2, T = 16, 24, 32
    for i in range(14):
        a(f's_waitcnt vmcnt({(13-i)*2+1 if P.get("TOUCH", 1) else 13-i})')
        t = T + 8*(i & 1)
        for j in range(4):
            a(f'v_lshlrev_b32 v{t+2*j}, 16, v{64+4*i+j}')
            a(f'v_and_b32 v{t+2*j+1}, 0xffff0000, v{64+4*i+j}')
        for j in range(0, 8, 2):
            if i == 0:
                a(f'v_mov_b32 v{S1+j}, v{t+j}'); a(f'v_mov_b32 v{S1+j+1}, v{t+j+1}')
                a(f'v_pk_mul_f32 {v(S2+j,2)}, {v(t+j,2)}, {v(t+j,2)}')
            else:
                a(f'v_pk_add_f32 {v(S1+j,2)}, {v(S1+j,2)}, {v(t+j,2)}')
                a(f'v_pk_fma_f32 {v(S2+j,2)}, {v(t+j,2)}, {v(t+j,2)}, {v(S2+j,2)}')
    stamp(a)
    for e in range(8): a(f'v_permlane32_swap_b32 v{S1+e}, v{S2+e}')
    for e in range(8): a(f'v_add_f32 v{S1+e}, v{S1+e}, v{S2+e}')
    for e in range(4): a(f'v_permlane16_swap_b32 v{S1+e}, v{S1+4+e}')
    for e in range(4): a(f'v_add_f32 v{S1+e}, v{S1+e}, v{S1+4+e}')
    for e in range(4): a(f'v_add_f32_dpp v{S1+e}, v{S1+e}, v{S1+e} row_ror:8 row_mask:0xf bank_mask:0xf')
    a(f'ds_write_b128 v6, {v(S1,4)}')
    a('s_waitcnt lgkmcnt(0)')
    a('s_barrier')
    a('v_readfirstlane_b32 s20, v1')
    a('s_cmp_lg_u32 s20, 0')
    a('s_cbranch_scc1 kb_end')
    for n in range(8): a(f'ds_read_b32 v{32+n}, v7 offset:{256*n}')
    a('s_waitcnt lgkmcnt(0)')
    a('v_add_f32 v32, v32, v34'); a('v_add_f32 v33, v33, v35')
    a('v_add_f32 v36, v36, v38'); a('v_add_f32 v37, v37, v39')
    a('v_add_f32 v32, v32, v36'); a('v_add_f32 v33, v33, v37')
    a(f'v_mul_f32 v32, {fhex(1.0/448)}, v32')
    a(f'v_mul_f32 v33, {fhex(1.0/448)}, v33')
    a('v_fma_f32 v33, -v32, v32, v33')
    a('v_max_f32 v33, 0, v33')
    rb1(a, 33)
    a(f'v_add_f32 v33, {fhex(1e-5)}, v33')
    rb1(a, 33)
    a('v_sqrt_f32 v33, v33')
    a('v_cvt_pk_bf16_f32 v40, -v32, -v32')
    a('v_cvt_pk_bf16_f32 v42, v33, v33')
    a('v_and_b32 v33, 0xffff0000, v42')
    a('v_rcp_f32 v33, v33')
    a('v_mul_f32 v41, v33, v33')
    a('v_and_b32 v41, 0xffffff7f, v41')
    a('v_or_b32 v41, 1, v41')
    a('v_mov_b32 v43, v41')
    a('buffer_store_dwordx4 v[40:43], v8, s[16:19], s22 offen sc1')
    stamp_end(a, kidx)
    a.label('kb_end')
    a('s_endpgm')
    a.end_kernel(nm, accum=256, denorm=False)
    a.launch(nm, 224 + NH, 256, KB_LDS)

def kp(a):
    nm = 'kp_kernel'
    a.begin_kernel(nm)
    a('s_cmp_ge_u32 s2, 256')
    a('s_cbranch_scc1 kp_end')
    a('s_load_dwordx2 s[4:5], s[0:1], 136')
    a('s_and_b32 s6, s2, 1')
    a('s_lshr_b32 s7, s2, 3')
    a('v_lshlrev_b32 v1, 4, v0')
    HW = 28*2*29*1024
    a(f's_mul_i32 s8, s6, {HW}')
    a(f's_mul_i32 s9, s7, {13*4096}')
    a('s_add_u32 s8, s8, s9')
    a(f's_add_u32 s8, s8, {WP}')
    a(f's_add_u32 s9, s9, {WD}')
    a('s_waitcnt lgkmcnt(0)')
    srd(a, 16, 4, WSZ2)
    n = 0
    for i in range(13):
        if P.get('pfw', 1):
            a(f'buffer_load_dwordx4 {v(4+4*n,4)}, v1, s[16:19], s8 offen'); n += 1
            a('s_add_u32 s8, s8, 4096')
        if P.get('pfd', 1):
            a(f'buffer_load_dwordx4 {v(4+4*n,4)}, v1, s[16:19], s9 offen'); n += 1
            a('s_add_u32 s9, s9, 4096')
    a('s_waitcnt vmcnt(0)')
    a.label('kp_end')
    a('s_endpgm')
    a.end_kernel(nm, denorm=False)
    a.launch(nm, 256, 256, 0)

def kz(a):
    nm = 'kz_kernel'
    a.begin_kernel(nm)
    a('s_cmp_ge_u32 s2, 1')
    a('s_cbranch_scc1 kz_end')
    a('s_memrealtime s[10:11]')
    a('s_load_dwordx2 s[4:5], s[0:1], 128')
    a('s_waitcnt lgkmcnt(0)')
    a('s_load_dwordx16 s[16:31], s[4:5], 0')
    a('s_waitcnt lgkmcnt(0)')
    def val(spec, dst):
        k = int(spec[1])
        if spec[0] == 's': a(f's_not_b32 s{dst}, s{16+4*k}')
        elif spec[0] == 'e': a(f's_mov_b32 s{dst}, s{16+4*k+1}')
        else: a(f's_mov_b32 s{dst}, s10')
    lo, hi = P['zi'].split('-')
    val(lo, 6); val(hi, 7)
    a('s_sub_u32 s6, s7, s6')
    a('s_min_u32 s6, s6, 5000')
    a(f's_mul_i32 s6, s6, {P.get("zm", 4)}')
    a.label('kz_loop')
    a('s_memrealtime s[12:13]')
    a('s_waitcnt lgkmcnt(0)')
    a('s_sub_u32 s8, s12, s10')
    a('s_cmp_lt_u32 s8, s6')
    a('s_cbranch_scc1 kz_loop')
    a.label('kz_end')
    a('s_endpgm')
    a.end_kernel(nm, denorm=False)
    a.launch(nm, 1, 64, 0)
```

```python
import sys, gen
kw = dict(ks='ab', pfn=5, zero=5, xtile=1, g1map='4x7', HR=2)
for x in sys.argv[2:]:
    k, val = x.split('=')
    kw[k] = int(val) if val.lstrip('-').isdigit() else val
gen.build(sys.argv[1], **kw)
```
